```python
import torch

def _softmax(x, axis=-1):
    return torch.softmax(x, dim=axis)
def _gelu(x):
    return torch.nn.functional.gelu(x, approximate="tanh")
def _silu(x):
    return torch.nn.functional.silu(x)
def _sigmoid(x):
    return torch.sigmoid(x)
def _layernorm(x, axis=-1, eps=1e-5):
    m = x.mean(dim=axis, keepdim=True)
    v = x.var(dim=axis, keepdim=True, unbiased=False)
    return (x - m) / torch.sqrt(v + eps)
def _scatter_add(tgt, idx, src, axis=0):
    return tgt.clone().index_add_(axis, idx, src)
def _segment_sum(src, seg, n):
    out = torch.zeros((n,) + src.shape[1:], dtype=src.dtype)
    return out.index_add_(0, seg, src)
def _pad(x, pw):
    flat = tuple(v for pair in reversed(pw) for v in pair)
    return torch.nn.functional.pad(x, flat)

kernel_name = 'concat_heads__gqa_block_cached__gqa_block_cached__decode'

def setup_inputs():

    _w = (lambda a: (lambda t: t.to(torch.bfloat16) if t.is_floating_point() else t)(torch.as_tensor(a)))
    def _A_setup():
        B, Sq, D = 4, 1, 512
        Hq, Hkv, Sk, Dh = 32, 8, 16384, 128
        assert Hq % Hkv == 0, (Hq, Hkv)
        return {
            "x": _w((lambda *s: torch.randn(*s, dtype=torch.bfloat16) * 0.8)(B, Sq, D)),
            "k_cache": _w((lambda *s: torch.randn(*s, dtype=torch.bfloat16) * 0.8)(B, Hkv, Sk, Dh)),
            "v_cache": _w((lambda *s: torch.randn(*s, dtype=torch.bfloat16) * 0.05)(B, Hkv, Sk, Dh)),
            "wq": _w((lambda *s: torch.randn(*s, dtype=torch.bfloat16) * 0.8)(D, Hq * Dh) * (D ** -0.5)),
            "wo": _w((lambda *s: torch.randn(*s, dtype=torch.bfloat16) * 0.05)(Hq * Dh, D) * ((Hq * Dh) ** -0.5)),
        }
    _A_in = _A_setup()

    def _B_setup():
        B, Sq, D = 4, 1, 512
        Hq, Hkv, Sk, Dh = 32, 8, 16384, 128
        assert Hq % Hkv == 0, (Hq, Hkv)
        return {
            "x": _w((lambda *s: torch.randn(*s, dtype=torch.bfloat16) * 0.8)(B, Sq, D)),
            "k_cache": _w((lambda *s: torch.randn(*s, dtype=torch.bfloat16) * 0.8)(B, Hkv, Sk, Dh)),
            "v_cache": _w((lambda *s: torch.randn(*s, dtype=torch.bfloat16) * 0.05)(B, Hkv, Sk, Dh)),
            "wq": _w((lambda *s: torch.randn(*s, dtype=torch.bfloat16) * 0.8)(D, Hq * Dh) * (D ** -0.5)),
            "wo": _w((lambda *s: torch.randn(*s, dtype=torch.bfloat16) * 0.05)(Hq * Dh, D) * ((Hq * Dh) ** -0.5)),
        }
    _B_in = _B_setup()

    return {
        "A_x": _A_in["x"],
        "A_k_cache": _A_in["k_cache"],
        "A_v_cache": _A_in["v_cache"],
        "A_wq": _A_in["wq"],
        "A_wo": _A_in["wo"],
        "B_x": _B_in["x"],
        "B_k_cache": _B_in["k_cache"],
        "B_v_cache": _B_in["v_cache"],
        "B_wq": _B_in["wq"],
        "B_wo": _B_in["wo"],
    }

def reference(A_x, A_k_cache, A_v_cache, A_wq, A_wo, B_x, B_k_cache, B_v_cache, B_wq, B_wo):
    def _A_ref(x, k_cache, v_cache, wq, wo):
        B, Sq, D = x.shape
        Hq, Dh = 32, 128
        Hkv = k_cache.shape[1]
        rep = Hq // Hkv
        q = (lambda x, *d: x.permute(*d))((x @ wq).reshape(B, Sq, Hq, Dh), 0, 2, 1, 3)
        k = (lambda x, n, axis: torch.repeat_interleave(x, n, dim=axis))(k_cache, rep, axis=1)
        v = (lambda x, n, axis: torch.repeat_interleave(x, n, dim=axis))(v_cache, rep, axis=1)
        scores = torch.einsum("bhqd,bhkd->bhqk", q, k) * (Dh ** -0.5)
        p = _softmax(scores, axis=-1)
        o = torch.einsum("bhqk,bhkd->bhqd", p, v)
        return (lambda x, *d: x.permute(*d))(o, 0, 2, 1, 3).reshape(B, Sq, Hq * Dh) @ wo

    def _B_ref(x, k_cache, v_cache, wq, wo):
        B, Sq, D = x.shape
        Hq, Dh = 32, 128
        Hkv = k_cache.shape[1]
        rep = Hq // Hkv
        q = (lambda x, *d: x.permute(*d))((x @ wq).reshape(B, Sq, Hq, Dh), 0, 2, 1, 3)
        k = (lambda x, n, axis: torch.repeat_interleave(x, n, dim=axis))(k_cache, rep, axis=1)
        v = (lambda x, n, axis: torch.repeat_interleave(x, n, dim=axis))(v_cache, rep, axis=1)
        scores = torch.einsum("bhqd,bhkd->bhqk", q, k) * (Dh ** -0.5)
        p = _softmax(scores, axis=-1)
        o = torch.einsum("bhqk,bhkd->bhqd", p, v)
        return (lambda x, *d: x.permute(*d))(o, 0, 2, 1, 3).reshape(B, Sq, Hq * Dh) @ wo

    a = _A_ref(A_x, A_k_cache, A_v_cache, A_wq, A_wo)
    b = _B_ref(B_x, B_k_cache, B_v_cache, B_wq, B_wo)
    return torch.concatenate([a, b], axis=-1)
```

```python
import sys, math, struct
NAME = "concat_heads__gqa_block_cached__gqa_block_cached__decode"

def f2u(x): return struct.unpack("<I", struct.pack("<f", x))[0]
CSC = f2u(math.log2(math.e) / math.sqrt(128.0))

WS_Q = 0
WS_PO = 0x10000
WS_PML = 0x90000
WS_OP = 0xA0000
WS_USED = 0xC0000

L = []
def A(s): L.append(s)
def nop(n):
    while n > 0:
        k = min(n, 16); A(f"s_nop {k-1}"); n -= k

def srd(d, lo, hi, nbytes):
    A(f"s_mov_b32 s{d}, s{lo}"); A(f"s_mov_b32 s{d+1}, s{hi}")
    A(f"s_mov_b32 s{d+2}, {nbytes:#x}"); A(f"s_mov_b32 s{d+3}, 0x20000")

def kstart(name):
    A(f".globl {name}"); A(".p2align 8"); A(f".type {name},@function"); A(f"{name}:")

def kdesc(name, nv, ns, acc):
    A('.section .rodata,"a"'); A(".p2align 6"); A(f".amdhsa_kernel {name}")
    A(f"  .amdhsa_next_free_vgpr {nv}"); A(f"  .amdhsa_next_free_sgpr {ns}"); A(f"  .amdhsa_accum_offset {acc}")
    A("  .amdhsa_group_segment_fixed_size 0"); A("  .amdhsa_kernarg_size 104"); A("  .amdhsa_user_sgpr_count 2")
    A("  .amdhsa_user_sgpr_kernarg_segment_ptr 1"); A("  .amdhsa_system_sgpr_workgroup_id_x 1"); A(".end_amdhsa_kernel")
    A(".text")

def proj_voff(vd, ln, t1, rowstride):
    sh = int(math.log2(rowstride))
    A(f"v_bfe_u32 v{vd}, v{ln}, 2, 2")
    A(f"v_lshlrev_b32 v{vd}, {5+sh}, v{vd}")
    A(f"v_lshrrev_b32 v{t1}, 4, v{ln}")
    A(f"v_lshlrev_b32 v{t1}, {3+sh}, v{t1}")
    A(f"v_add_u32 v{vd}, v{vd}, v{t1}")
    A(f"v_and_b32 v{t1}, 3, v{ln}")
    A(f"v_lshl_add_u32 v{vd}, v{t1}, 4, v{vd}")

def proj_load(W, voff, srdr, sbase, stmp, rowstride, flags=""):
    for rho in range(4):
        for e in range(8):
            off = (rho * 128 + e) * rowstride
            r = W + (rho * 8 + e) * 4
            hi = off & ~0xfff; lo = off & 0xfff
            if hi == 0:
                so = f"s{sbase}"
            else:
                if lo == 0 or (rho, e) == (0, 0) or rowstride >= 4096:
                    A(f"s_add_u32 s{stmp}, s{sbase}, {hi:#x}")
                so = f"s{stmp}"
            A(f"buffer_load_dwordx4 v[{r}:{r+3}], v{voff}, s[{srdr}:{srdr+3}], {so} offen offset:{lo}{flags}")

def xop_voff(vd, ln, t1):
    A(f"v_and_b32 v{vd}, 3, v{ln}")
    A(f"v_lshlrev_b32 v{vd}, 10, v{vd}")
    A(f"v_bfe_u32 v{t1}, v{ln}, 2, 2")
    A(f"v_lshl_add_u32 v{vd}, v{t1}, 6, v{vd}")
    A(f"v_lshrrev_b32 v{t1}, 4, v{ln}")
    A(f"v_lshl_add_u32 v{vd}, v{t1}, 4, v{vd}")

def transpose_mfma(src, T, acc, bop, selLo, selHi, first):
    for w in range(4):
        for p in range(4):
            A(f"v_perm_b32 v{T+p}, v{src+(2*p+1)*4+w}, v{src+(2*p)*4+w}, s{selLo}")
        for p in range(4):
            A(f"v_perm_b32 v{T+4+p}, v{src+(2*p+1)*4+w}, v{src+(2*p)*4+w}, s{selHi}")
        a0 = acc + (2*w) * 4; a1 = acc + (2*w+1) * 4
        c0 = "0" if first else f"v[{a0}:{a0+3}]"
        c1 = "0" if first else f"v[{a1}:{a1+3}]"
        A(f"v_mfma_f32_16x16x32_bf16 v[{a0}:{a0+3}], v[{T}:{T+3}], {bop}, {c0}")
        nop(1)
        A(f"v_mfma_f32_16x16x32_bf16 v[{a1}:{a1+3}], v[{T+4}:{T+7}], {bop}, {c1}")

def proj_reduce(acc, ln, t, ldsbase, sx):
    A(f"v_lshrrev_b32 v{t}, 4, v{ln}")
    A(f"v_bfe_u32 v{t+1}, v{ln}, 2, 2")
    A(f"v_cmp_eq_u32 vcc, v{t}, v{t+1}")
    A(f"v_lshlrev_b32 v{t}, 9, v{t}")
    A(f"v_and_b32 v{t+1}, 3, v{ln}")
    A(f"v_lshl_add_u32 v{t}, v{t+1}, 7, v{t}")
    nop(8)
    A(f"s_and_saveexec_b64 s[{sx}:{sx+1}], vcc")
    for jn in range(8):
        A(f"ds_write_b128 v{t}, v[{acc+jn*4}:{acc+jn*4+3}] offset:{ldsbase + jn*16}")
    A(f"s_mov_b64 exec, s[{sx}:{sx+1}]")
    A(f"v_lshrrev_b32 v{t}, 4, v{ln}")
    A(f"v_lshlrev_b32 v{t}, 7, v{t}")
    A(f"v_and_b32 v{t+1}, 3, v{ln}")
    A(f"v_lshl_add_u32 v{t}, v{t+1}, 5, v{t}")
    A(f"v_bfe_u32 v{t+1}, v{ln}, 2, 2")
    A(f"v_lshl_add_u32 v{t}, v{t+1}, 2, v{t}")
    A(f"v_add_u32 v{t}, {ldsbase}, v{t}")
    A(f"v_add_u32 v{t+1}, 1024, v{t}")
    A("s_waitcnt lgkmcnt(0)")
    A(f"ds_read2_b32 v[{t+2}:{t+3}], v{t} offset0:0 offset1:4")
    A(f"ds_read2_b32 v[{t+4}:{t+5}], v{t} offset0:128 offset1:132")
    A(f"ds_read2_b32 v[{t+6}:{t+7}], v{t+1} offset0:0 offset1:4")
    A(f"ds_read2_b32 v[{t+8}:{t+9}], v{t+1} offset0:128 offset1:132")
    A("s_waitcnt lgkmcnt(0)")
    A(f"v_add_f32 v{t+2}, v{t+2}, v{t+4}"); A(f"v_add_f32 v{t+3}, v{t+3}, v{t+5}")
    A(f"v_add_f32 v{t+6}, v{t+6}, v{t+8}"); A(f"v_add_f32 v{t+7}, v{t+7}, v{t+9}")
    A(f"v_add_f32 v{t+2}, v{t+2}, v{t+6}"); A(f"v_add_f32 v{t+3}, v{t+3}, v{t+7}")

def decode_wg():
    A("s_and_b32 s31, s2, 15")
    A("s_lshr_b32 s28, s31, 3")
    A("s_and_b32 s29, s31, 7")
    A("s_lshr_b32 s30, s2, 4")

def sel_ptr(d, a_off, b_off, tmp):
    A(f"s_mul_i32 s{tmp}, s28, 40")
    A(f"s_add_u32 s{tmp}, s{tmp}, {a_off}")
    A(f"s_load_dwordx2 s[{d}:{d+1}], s[0:1], s{tmp}")

A("; @launch kernel=qproj_kernel grid=(256,1,1) block=(64,1,1) lds=2048")
A("; @launch kernel=attn_kernel grid=(256,1,1) block=(256,1,1) lds=90000")
A("; @launch kernel=oproj_kernel grid=(256,1,1) block=(256,1,1) lds=8192")
A("; @launch kernel=fin_kernel grid=(32,1,1) block=(64,1,1) lds=0")
A('.amdgcn_target "amdgcn-amd-amdhsa--gfx950"')
A(".text")

kstart("qproj_kernel")
A("s_cmp_ge_u32 s2, 256"); A("s_cbranch_scc1 Lq_end")
decode_wg()
sel_ptr(4, 0, 40, 32)
sel_ptr(6, 24, 64, 33)
A("s_load_dwordx2 s[8:9], s[0:1], 96")
proj_voff(1, 0, 2, 8192)
xop_voff(3, 0, 2)
A("s_mov_b32 s34, 0x05040100"); A("s_mov_b32 s35, 0x07060302")
A("s_lshl_b32 s36, s29, 10")
A("s_lshl_b32 s37, s30, 6")
A("s_add_u32 s36, s36, s37")
A("s_waitcnt lgkmcnt(0)")
srd(12, 4, 5, 4096); srd(16, 6, 7, 4 << 20); srd(20, 8, 9, WS_USED)
X = 16; W = 32; ACC = 160; T = 192
for rho in range(4):
    A(f"buffer_load_dwordx4 v[{X+rho*4}:{X+rho*4+3}], v3, s[12:15], 0 offen offset:{rho*256}")
proj_load(W, 1, 16, 36, 37, 8192)
for rho in range(4):
    A(f"s_waitcnt vmcnt({24 - rho*8})")
    transpose_mfma(W + rho*32, T, ACC, f"v[{X+rho*4}:{X+rho*4+3}]", 34, 35, rho == 0)
proj_reduce(ACC, 0, 4, 0, 38)
A("v_cvt_pk_bf16_f32 v6, v6, v7")
A("v_lshrrev_b32 v4, 4, v0"); A("v_lshlrev_b32 v4, 13, v4")
A("v_and_b32 v5, 15, v0"); A("v_lshl_add_u32 v4, v5, 2, v4")
A("s_lshl_b32 s37, s28, 15"); A("s_add_u32 s36, s36, s37")
A(f"buffer_store_dword v6, v4, s[20:23], s36 offen offset:{WS_Q}")
A("Lq_end:"); A("s_endpgm")
kdesc("qproj_kernel", 200, 48, 200)

kstart("attn_kernel")
A("s_cmp_ge_u32 s2, 256"); A("s_cbranch_scc1 La_end")
decode_wg()
A("s_mul_i32 s32, s28, 40"); A("s_add_u32 s32, s32, 8")
A("s_load_dwordx4 s[4:7], s[0:1], s32")
A("s_load_dwordx2 s[8:9], s[0:1], 96")
A("v_lshrrev_b32 v1, 6, v0")
A("v_and_b32 v0, 63, v0")
A("v_readfirstlane_b32 s33, v1")
A("s_lshr_b32 s34, s30, 2"); A("s_lshl_b32 s34, s34, 3"); A("s_add_u32 s34, s34, s29"); A("s_lshl_b32 s34, s34, 2")
A("s_and_b32 s35, s30, 3"); A("s_add_u32 s34, s34, s35"); A("s_lshl_b32 s34, s34, 20")
A("v_lshlrev_b32 v2, 4, v0"); A("v_add_u32 v3, 0x1000, v2")
A("v_and_b32 v4, 3, v0"); A("v_lshlrev_b32 v4, 10, v4")
A("v_bfe_u32 v5, v0, 2, 2"); A("v_lshl_add_u32 v4, v5, 8, v4")
A("v_lshrrev_b32 v5, 4, v0"); A("v_lshl_add_u32 v4, v5, 4, v4")
A("v_add_u32 v5, 0x1000, v4")
A("s_lshl_b32 s36, s33, 13")
for r in range(2, 6): A(f"v_add_u32 v{r}, s36, v{r}")
A("s_waitcnt lgkmcnt(0)")
A("s_add_u32 s4, s4, s34"); A("s_addc_u32 s5, s5, 0")
A("s_add_u32 s6, s6, s34"); A("s_addc_u32 s7, s7, 0")
srd(12, 4, 5, 1 << 20); srd(16, 6, 7, 1 << 20); srd(20, 8, 9, WS_USED)
D = 2
QA = 0
KA = 16
S = 8; T = 16; O = 24; VR = 56
M_, MC, LS, T0, T1, AL = 124, 125, 126, 127, 6, 7
def kload(slot):
    for t in range(2):
        for g in range(4):
            r = KA + slot*32 + (t*4+g)*4
            A(f"buffer_load_dwordx4 a[{r}:{r+3}], v{4+t}, s[12:15], 0 offen offset:{g*64} nt")
    A("v_add_u32 v4, 0x8000, v4"); A("v_add_u32 v5, 0x8000, v5")
def vload(slot):
    for t in range(2):
        for g in range(4):
            r = VR + slot*32 + (t*4+g)*4
            A(f"buffer_load_dwordx4 v[{r}:{r+3}], v{2+t}, s[16:19], 0 offen offset:{g*1024} nt")
    A("v_add_u32 v2, 0x8000, v2"); A("v_add_u32 v3, 0x8000, v3")
A("v_and_b32 v8, 3, v0"); A("v_lshlrev_b32 v8, 8, v8")
A("v_lshrrev_b32 v9, 4, v0"); A("v_lshl_add_u32 v8, v9, 4, v8")
A("s_lshl_b32 s37, s28, 15"); A("s_lshr_b32 s38, s30, 2"); A("s_lshl_b32 s38, s38, 13"); A("s_add_u32 s37, s37, s38")
A("s_lshl_b32 s38, s29, 10"); A("s_add_u32 s37, s37, s38")
for g in range(4):
    A(f"buffer_load_dwordx4 a[{QA+g*4}:{QA+g*4+3}], v8, s[20:23], s37 offen offset:{WS_Q + g*64}")
for d in range(D):
    kload(d); vload(d)
A("s_mov_b32 s40, 0x05040100"); A("s_mov_b32 s41, 0x07060302"); A(f"s_mov_b32 s42, {CSC:#x}")
for i in range(32): A(f"v_mov_b32 v{O+i}, 0")
A(f"v_mov_b32 v{M_}, 0xff800000"); A(f"v_mov_b32 v{MC}, 0xff800000"); A(f"v_mov_b32 v{LS}, 0")
A(f"s_mov_b32 s43, {32 // D}")
A("La_loop:")
for d in range(D):
    A(f"s_waitcnt vmcnt({16*D-8})")
    for g in range(4):
        for t in range(2):
            r = KA + d*32 + (t*4+g)*4
            c = "0" if g == 0 else f"v[{S+t*4}:{S+t*4+3}]"
            A(f"v_mfma_f32_16x16x32_bf16 v[{S+t*4}:{S+t*4+3}], a[{r}:{r+3}], a[{QA+g*4}:{QA+g*4+3}], {c}")
    kload(d)
    nop(1)
    A(f"v_max3_f32 v{T0}, v{S}, v{S+1}, v{S+2}")
    A(f"v_max3_f32 v{T1}, v{S+3}, v{S+4}, v{S+5}")
    A(f"v_max3_f32 v{T0}, v{S+6}, v{S+7}, v{T0}")
    A(f"v_max3_f32 v{T0}, v{T0}, v{T1}, v{M_}")
    A(f"v_mov_b32 v{T1}, v{T0}")
    nop(2)
    A(f"v_permlane32_swap_b32 v{T0}, v{T1}")
    A(f"v_max_f32 v{T0}, v{T0}, v{T1}")
    A(f"v_mov_b32 v{T1}, v{T0}")
    nop(2)
    A(f"v_permlane16_swap_b32 v{T0}, v{T1}")
    A(f"v_max_f32 v{M_}, v{T0}, v{T1}")
    A(f"v_mul_f32 v{T0}, s42, v{M_}")
    A(f"v_sub_f32 v{AL}, v{MC}, v{T0}")
    A(f"v_mov_b32 v{MC}, v{T0}")
    A(f"v_exp_f32 v{AL}, v{AL}")
    for i in range(8): A(f"v_fma_f32 v{S+i}, v{S+i}, s42, -v{MC}")
    for i in range(8): A(f"v_exp_f32 v{S+i}, v{S+i}")
    for i in range(32): A(f"v_mul_f32 v{O+i}, v{O+i}, v{AL}")
    A(f"v_add_f32 v{T0}, v{S}, v{S+1}"); A(f"v_add_f32 v{T1}, v{S+2}, v{S+3}")
    A(f"v_add_f32 v{T0}, v{T0}, v{S+4}"); A(f"v_add_f32 v{T1}, v{T1}, v{S+5}")
    A(f"v_add_f32 v{T0}, v{T0}, v{S+6}"); A(f"v_add_f32 v{T1}, v{T1}, v{S+7}")
    A(f"v_add_f32 v{T0}, v{T0}, v{T1}")
    A(f"v_fma_f32 v{LS}, v{LS}, v{AL}, v{T0}")
    for p in range(4): A(f"v_cvt_pk_bf16_f32 v{S+p}, v{S+2*p}, v{S+2*p+1}")
    A(f"s_waitcnt vmcnt({16*D-8})")
    transpose_mfma(VR + d*32, T, O, f"v[{S}:{S+3}]", 40, 41, False)
    vload(d)
A("s_sub_u32 s43, s43, 1"); A("s_cmp_lg_u32 s43, 0"); A("s_cbranch_scc1 La_loop")
A(f"v_mov_b32 v{T1}, v{LS}"); nop(2)
A(f"v_permlane32_swap_b32 v{LS}, v{T1}"); A(f"v_add_f32 v{LS}, v{LS}, v{T1}")
A(f"v_mov_b32 v{T1}, v{LS}"); nop(2)
A(f"v_permlane16_swap_b32 v{LS}, v{T1}"); A(f"v_add_f32 v{LS}, v{LS}, v{T1}")
A("v_and_b32 v8, 3, v0"); A("v_lshlrev_b32 v9, 9, v8")
A("v_lshrrev_b32 v10, 4, v0"); A("v_lshl_add_u32 v9, v10, 4, v9")
A("s_lshl_b32 s37, s33, 11"); A("v_add_u32 v9, s37, v9")
A("s_lshl_b32 s37, s33, 5"); A("v_lshlrev_b32 v8, 3, v8"); A("v_add_u32 v8, s37, v8")
A("v_and_b32 v10, 12, v0"); A("v_cmp_eq_u32 vcc, 0, v10")
A(f"v_mov_b32 v12, v{MC}"); A(f"v_mov_b32 v13, v{LS}")
A("s_and_saveexec_b64 s[38:39], vcc")
for jd in range(8):
    A(f"ds_write_b128 v9, v[{O+jd*4}:{O+jd*4+3}] offset:{jd*64}")
A("ds_write_b64 v8, v[12:13] offset:8192")
A("s_mov_b64 exec, s[38:39]")
A("s_waitcnt lgkmcnt(0)")
A("s_barrier")
A("v_and_b32 v8, 3, v0"); A("v_lshlrev_b32 v8, 7, v8")
A("v_lshrrev_b32 v9, 2, v0"); A("v_lshl_add_u32 v8, v9, 2, v8")
A("s_lshl_b32 s37, s33, 9"); A("v_add_u32 v8, s37, v8")
A("s_lshl_b32 s37, s33, 3"); A("v_mov_b32 v9, s37")
for w in range(4):
    A(f"v_add_u32 v10, {w*2048}, v8")
    A(f"ds_read2_b32 v[{16+w*2}:{17+w*2}], v10 offset0:0 offset1:16")
    A(f"ds_read_b64 v[{24+w*2}:{25+w*2}], v9 offset:{8192+w*32}")
A("s_waitcnt lgkmcnt(0)")
A("v_max3_f32 v32, v24, v26, v28"); A("v_max_f32 v32, v32, v30")
for w in range(4):
    A(f"v_sub_f32 v{34+w}, v{24+w*2}, v32")
for w in range(4):
    A(f"v_exp_f32 v{34+w}, v{34+w}")
nop(1)
A("v_mul_f32 v12, v16, v34"); A("v_mul_f32 v13, v17, v34"); A("v_mul_f32 v33, v25, v34")
for w in range(1, 4):
    A(f"v_fmac_f32 v12, v{16+w*2}, v{34+w}"); A(f"v_fmac_f32 v13, v{17+w*2}, v{34+w}"); A(f"v_fmac_f32 v33, v{25+w*2}, v{34+w}")
A("s_lshl_b32 s37, s31, 4"); A("s_add_u32 s37, s37, s30")
A("s_lshl_b32 s38, s37, 11"); A("s_lshl_b32 s39, s33, 9"); A("s_add_u32 s38, s38, s39"); A(f"s_add_u32 s38, s38, {WS_PO:#x}")
A("v_lshlrev_b32 v8, 3, v0")
A("buffer_store_dwordx2 v[12:13], v8, s[20:23], s38 offen")
A("s_lshl_b32 s38, s37, 5"); A("s_lshl_b32 s39, s33, 3"); A("s_add_u32 s38, s38, s39"); A(f"s_add_u32 s38, s38, {WS_PML:#x}")
A("v_cmp_eq_u32 vcc, 0, v0"); A("s_and_saveexec_b64 s[44:45], vcc")
A("buffer_store_dwordx2 v[32:33], v8, s[20:23], s38 offen")
A("La_end:"); A("s_endpgm")
kdesc("attn_kernel", 128 + 80, 48, 128)

kstart("oproj_kernel")
A("s_cmp_ge_u32 s2, 256"); A("s_cbranch_scc1 Lo_end")
decode_wg()
sel_ptr(6, 32, 72, 33)
A("s_load_dwordx2 s[8:9], s[0:1], 96")
A("v_lshrrev_b32 v1, 6, v0")
A("v_and_b32 v2, 63, v0")
A("v_readfirstlane_b32 s33, v1")
A("s_waitcnt lgkmcnt(0)")
srd(16, 6, 7, 4 << 20); srd(20, 8, 9, WS_USED)
W = 72; ACC = 200; T = 232; X = 240
A("s_cmp_lg_u32 s33, 0"); A("s_cbranch_scc1 Lo_now")
proj_voff(3, 2, 4, 1024)
A("s_lshl_b32 s36, s29, 19"); A("s_lshl_b32 s37, s30, 6"); A("s_add_u32 s36, s36, s37")
proj_load(W, 3, 16, 36, 37, 1024)
A("Lo_now:")
A("v_lshlrev_b32 v4, 5, v2")
A("v_lshrrev_b32 v5, 4, v2"); A("v_lshlrev_b32 v5, 3, v5")
A("s_lshl_b32 s37, s31, 4"); A("s_lshl_b32 s38, s33, 2"); A("s_add_u32 s37, s37, s38")
A("s_lshl_b32 s38, s37, 11"); A(f"s_add_u32 s38, s38, {WS_PO:#x}")
A("s_lshl_b32 s39, s37, 5"); A(f"s_add_u32 s39, s39, {WS_PML:#x}")
for sp in range(4):
    A(f"buffer_load_dwordx2 v[{8+sp*2}:{9+sp*2}], v5, s[20:23], s39 offen offset:{sp*32}")
for sp in range(4):
    if sp == 2: A("s_add_u32 s38, s38, 4096")
    A(f"buffer_load_dwordx4 v[{16+sp*8}:{19+sp*8}], v4, s[20:23], s38 offen offset:{(sp&1)*2048}")
    A(f"buffer_load_dwordx4 v[{20+sp*8}:{23+sp*8}], v4, s[20:23], s38 offen offset:{(sp&1)*2048+16}")
A("s_waitcnt vmcnt(8)")
A("v_max3_f32 v48, v8, v10, v12"); A("v_max_f32 v48, v48, v14")
for sp in range(4): A(f"v_sub_f32 v{50+sp}, v{8+sp*2}, v48")
for sp in range(4): A(f"v_exp_f32 v{50+sp}, v{50+sp}")
nop(1)
A("v_mul_f32 v49, v9, v50")
for sp in range(1, 4): A(f"v_fmac_f32 v49, v{9+sp*2}, v{50+sp}")
A("v_rcp_f32 v49, v49")
nop(1)
for sp in range(4): A(f"v_mul_f32 v{50+sp}, v{50+sp}, v49")
A("s_waitcnt vmcnt(0)")
for i in range(8): A(f"v_mul_f32 v{56+i}, v{16+i}, v50")
for sp in range(1, 4):
    for i in range(8): A(f"v_fmac_f32 v{56+i}, v{16+sp*8+i}, v{50+sp}")
for p in range(4): A(f"v_cvt_pk_bf16_f32 v{64+p}, v{56+2*p}, v{57+2*p}")
A("v_lshlrev_b32 v4, 4, v0")
A("ds_write_b128 v4, v[64:67]")
A("s_waitcnt lgkmcnt(0)")
A("s_barrier")
A("s_cmp_lg_u32 s33, 0"); A("s_cbranch_scc1 Lo_end")
xop_voff(3, 2, 4)
for rho in range(4):
    A(f"ds_read_b128 v[{X+rho*4}:{X+rho*4+3}], v3 offset:{rho*256}")
A("s_mov_b32 s34, 0x05040100"); A("s_mov_b32 s35, 0x07060302")
A("s_waitcnt lgkmcnt(0)")
for rho in range(4):
    transpose_mfma(W + rho*32, T, ACC, f"v[{X+rho*4}:{X+rho*4+3}]", 34, 35, rho == 0)
proj_reduce(ACC, 2, 4, 4096, 38)
A("s_lshl_b32 s37, s28, 4"); A("s_add_u32 s37, s37, s30"); A("s_lshl_b32 s37, s37, 3"); A("s_add_u32 s37, s37, s29")
A("s_lshl_b32 s37, s37, 9"); A(f"s_add_u32 s37, s37, {WS_OP:#x}")
A("v_lshlrev_b32 v4, 3, v2")
A("buffer_store_dwordx2 v[6:7], v4, s[20:23], s37 offen")
A("Lo_end:"); A("s_endpgm")
kdesc("oproj_kernel", 256, 48, 256)

kstart("fin_kernel")
A("s_cmp_ge_u32 s2, 32"); A("s_cbranch_scc1 Lf_end")
A("s_load_dwordx2 s[4:5], s[0:1], 80")
A("s_load_dwordx2 s[8:9], s[0:1], 96")
A("v_lshlrev_b32 v4, 3, v0")
A("s_lshl_b32 s37, s2, 12"); A(f"s_add_u32 s37, s37, {WS_OP:#x}")
A("s_waitcnt lgkmcnt(0)")
srd(12, 4, 5, 8192); srd(20, 8, 9, WS_USED)
for k in range(8):
    A(f"buffer_load_dwordx2 v[{8+k*2}:{9+k*2}], v4, s[20:23], s37 offen offset:{k*512}")
A("v_lshrrev_b32 v5, 4, v0"); A("v_lshlrev_b32 v5, 11, v5")
A("v_and_b32 v6, 15, v0"); A("v_lshl_add_u32 v5, v6, 2, v5")
A("s_lshl_b32 s38, s2, 6")
A("s_waitcnt vmcnt(0)")
for k in range(1, 8):
    A(f"v_add_f32 v8, v8, v{8+k*2}"); A(f"v_add_f32 v9, v9, v{9+k*2}")
A("v_cvt_pk_bf16_f32 v8, v8, v9")
A("buffer_store_dword v8, v5, s[12:15], s38 offen")
A("Lf_end:"); A("s_endpgm")
kdesc("fin_kernel", 32, 48, 32)

open(sys.argv[1] if len(sys.argv) > 1 else "v1.s", "w").write("\n".join(L) + "\n")
```

```python
import sys, math, struct
NAME = "concat_heads__gqa_block_cached__gqa_block_cached__decode"
def f2u(x): return struct.unpack("<I", struct.pack("<f", x))[0]
CSC = f2u(math.log2(math.e) / math.sqrt(128.0))

WS_Q = 0
WS_PO = 0x10000
PSTR = 2176
WS_CNT = 0x98000
WS_HINT = 0x9A000
WS_OP = 0xA0000
WS_DIAG = 0xC0000
WS_USED = 0xD0000
L_Q = 0; L_O = 4096; L_ML = 4096 + 8192; L_OB = 12544; L_RED = 12544 + 4096; L_TOT = L_RED + 2048
SPIN = 1 << 18

def gen(diag=False, D=2, dyn=True, seq=True, hint=True, cpf=True):
    L = []
    def A(s): L.append(s)
    def nop(n):
        while n > 0:
            k = min(n, 16); A(f"s_nop {k-1}"); n -= k
    def srd(d, lo, hi, nbytes):
        A(f"s_mov_b32 s{d}, s{lo}"); A(f"s_mov_b32 s{d+1}, s{hi}")
        A(f"s_mov_b32 s{d+2}, {nbytes:#x}"); A(f"s_mov_b32 s{d+3}, 0x20000")
    def stamp(i):
        if diag: A(f"s_memrealtime s[{66+2*i}:{67+2*i}]")
    def stamps_out(n, role, extra=None):
        if diag:
            A("s_waitcnt lgkmcnt(0)")
            A("s_mov_b64 exec, 1")
            A("s_lshl_b32 s37, s2, 7"); A(f"s_add_u32 s37, s37, {WS_DIAG + role*64:#x}")
            A("v_mov_b32 v1, 0")
            for i in range(n):
                A(f"v_mov_b32 v2, s{66+2*i}")
                A(f"buffer_store_dword v2, v1, s[20:23], s37 offen offset:{i*4}")
            if extra:
                A(f"v_mov_b32 v2, {extra}")
                A(f"buffer_store_dword v2, v1, s[20:23], s37 offen offset:56")
            A("s_getreg_b32 s38, hwreg(HW_REG_XCC_ID)")
            A("v_mov_b32 v2, s38")
            A(f"buffer_store_dword v2, v1, s[20:23], s37 offen offset:60")

    A(f"; @launch grid=(256,1,1) block=(320,1,1) lds={L_TOT}")
    A('.amdgcn_target "amdgcn-amd-amdhsa--gfx950"')
    A(".text")
    A(f".globl {NAME}_kernel"); A(".p2align 8"); A(f".type {NAME}_kernel,@function"); A(f"{NAME}_kernel:")
    A("s_cmp_ge_u32 s2, 256"); A("s_cbranch_scc1 L_end")
    stamp(0)
    A("s_lshr_b32 s28, s2, 7")
    A("s_mul_i32 s32, s28, 40")
    A("s_load_dwordx8 s[4:11], s[0:1], s32")
    A("s_add_u32 s32, s32, 32")
    A("s_load_dwordx2 s[44:45], s[0:1], s32")
    A("s_load_dwordx4 s[48:51], s[0:1], 80")
    A("s_load_dwordx2 s[46:47], s[0:1], 96")
    A("v_lshrrev_b32 v1, 6, v0")
    A("v_and_b32 v0, 63, v0")
    A("v_readfirstlane_b32 s33, v1")
    A("s_lshr_b32 s31, s2, 4"); A("s_and_b32 s29, s31, 7")
    A("s_and_b32 s30, s2, 7"); A("s_lshl_b32 s30, s30, 1"); A("s_bfe_u32 s32, s2, 0x10003"); A("s_add_u32 s30, s30, s32")
    A("s_and_b32 s34, s30, 3"); A("s_lshr_b32 s35, s30, 2")
    A("s_mov_b32 s40, 0x05040100"); A("s_mov_b32 s41, 0x07060302"); A(f"s_mov_b32 s42, {CSC:#x}")
    A("s_lshl_b32 s52, s31, 2"); A("s_add_u32 s52, s52, s34")
    A("s_lshl_b32 s62, s52, 7"); A(f"s_add_u32 s62, s62, {WS_CNT:#x}")
    A("s_lshl_b32 s52, s52, 2"); A("s_add_u32 s52, s52, s35")
    A("s_cmp_eq_u32 s33, 4"); A("s_cbranch_scc1 L_helper")

    QA = 0; KA = 16
    S = 8; T = 16; O = 24; VR = 56
    M_, MC, LS, T0, T1, AL = 124, 125, 126, 127, 6, 7
    KB, VB, CL, ZERO, ONE = 128, 129, 130, 134, 135
    ST = 56
    if cpf:
        A("s_cmp_lg_u32 s33, 0"); A("s_cbranch_scc1 L_nocpf")
        A("s_getpc_b64 s[36:37]")
        A("v_lshlrev_b32 v1, 7, v0")
        A("global_load_dword v136, v1, s[36:37]")
        A("L_nocpf:")
    A("s_lshl_b32 s36, s34, 3"); A("s_add_u32 s36, s36, s29"); A("s_lshl_b32 s36, s36, 22")
    A(f"v_lshlrev_b32 v{VB}, 4, v0")
    A(f"v_and_b32 v{KB}, 3, v0"); A(f"v_lshlrev_b32 v{KB}, 10, v{KB}")
    A(f"v_bfe_u32 v5, v0, 2, 2"); A(f"v_lshl_add_u32 v{KB}, v5, 8, v{KB}")
    A(f"v_lshrrev_b32 v5, 4, v0"); A(f"v_lshl_add_u32 v{KB}, v5, 4, v{KB}")
    if dyn:
        A("s_lshl_b32 s37, s35, 2"); A("s_add_u32 s37, s37, s33")
        for d in range(D):
            A(f"s_add_u32 s{ST+d}, s37, {16*d}"); A(f"s_lshl_b32 s{ST+d}, s{ST+d}, 13")
            A(f"s_add_u32 s38, s37, {16*(D+d)}"); A(f"v_mov_b32 v{CL+d}, s38")
    else:
        A("s_lshl_b32 s37, s35, 7"); A("s_add_u32 s37, s37, s33")
        for d in range(D):
            A(f"s_add_u32 s{ST+d}, s37, {4*d}"); A(f"s_lshl_b32 s{ST+d}, s{ST+d}, 13")
        A("s_add_u32 s63, s35, 1"); A("s_lshl_b32 s63, s63, 20")
    A(f"v_mov_b32 v{ZERO}, 0"); A(f"v_mov_b32 v{ONE}, 1"); A("v_mov_b32 v137, 0x7ffffff0")
    if dyn:
        A("s_mov_b32 s14, 0x400000"); A("s_mov_b32 s18, 0x400000")
    else:
        A("s_mov_b32 s14, s63"); A("s_mov_b32 s18, s63")
    A("s_mov_b32 s15, 0x20000"); A("s_mov_b32 s19, 0x20000")
    A("s_waitcnt lgkmcnt(0)")
    A("s_add_u32 s12, s6, s36"); A("s_addc_u32 s13, s7, 0")
    A("s_add_u32 s16, s8, s36"); A("s_addc_u32 s17, s9, 0")
    A("s_add_u32 s60, s46, s62"); A("s_addc_u32 s61, s47, 0")
    def kload(slot):
        A(f"v_add_u32 v4, s{ST+slot}, v{KB}"); A("v_add_u32 v5, 0x1000, v4")
        for t in range(2):
            for g in range(4):
                r = KA + slot*32 + (t*4+g)*4
                A(f"buffer_load_dwordx4 a[{r}:{r+3}], v{4+t}, s[12:15], 0 offen offset:{g*64} nt")
    def vload(slot):
        A(f"v_add_u32 v2, s{ST+slot}, v{VB}"); A("v_add_u32 v3, 0x1000, v2")
        for t in range(2):
            for g in range(4):
                r = VR + slot*32 + (t*4+g)*4
                A(f"buffer_load_dwordx4 v[{r}:{r+3}], v{2+t}, s[16:19], 0 offen offset:{g*1024} nt")
    def transpose_mfma(src, T, acc, bop):
        for w in range(4):
            for p in range(4):
                A(f"v_perm_b32 v{T+p}, v{src+(2*p+1)*4+w}, v{src+(2*p)*4+w}, s40")
            for p in range(4):
                A(f"v_perm_b32 v{T+4+p}, v{src+(2*p+1)*4+w}, v{src+(2*p)*4+w}, s41")
            a0 = acc + (2*w) * 4; a1 = acc + (2*w+1) * 4
            A(f"v_mfma_f32_16x16x32_bf16 v[{a0}:{a0+3}], v[{T}:{T+3}], {bop}, v[{a0}:{a0+3}]")
            nop(1)
            A(f"v_mfma_f32_16x16x32_bf16 v[{a1}:{a1+3}], v[{T+4}:{T+7}], {bop}, v[{a1}:{a1+3}]")
    assert D == 2
    if seq: A("s_barrier")
    kload(0); vload(0)
    stamp(1)
    srd(20, 46, 47, WS_USED)
    for i in range(32): A(f"v_mov_b32 v{O+i}, 0")
    A(f"v_mov_b32 v{M_}, 0xff800000"); A(f"v_mov_b32 v{MC}, 0xff800000"); A(f"v_mov_b32 v{LS}, 0")
    A("v_lshlrev_b32 v8, 4, v0")
    A("s_mov_b32 s43, 0")
    if seq: A("s_barrier")
    if dyn: A("buffer_load_dword v138, v137, s[12:15], 0 offen")
    kload(1)
    if seq: A("s_barrier")
    vload(1)
    A("s_barrier")
    for g in range(4):
        A(f"ds_read_b128 a[{QA+g*4}:{QA+g*4+3}], v8 offset:{L_Q + g*1024}")
    stamp(2)
    A("s_waitcnt lgkmcnt(0)")
    nk = (8 + 17*(D-1)) if dyn else 16*D-8
    nv = (17*(D-1) + 9) if dyn else 16*D-8
    A("L_loop:")
    for d in range(D):
        A(f"s_cmp_ge_u32 s{ST+d}, s14"); A("s_cbranch_scc1 L_loopdone")
        if diag: A("s_add_u32 s43, s43, 1")
        A(f"s_waitcnt vmcnt({nk})")
        for g in range(4):
            for t in range(2):
                r = KA + d*32 + (t*4+g)*4
                c = "0" if g == 0 else f"v[{S+t*4}:{S+t*4+3}]"
                A(f"v_mfma_f32_16x16x32_bf16 v[{S+t*4}:{S+t*4+3}], a[{r}:{r+3}], a[{QA+g*4}:{QA+g*4+3}], {c}")
        if dyn:
            A(f"v_readfirstlane_b32 s{ST+d}, v{CL+d}")
            A("s_mov_b64 exec, 1")
            A(f"global_atomic_add v{CL+d}, v{ZERO}, v{ONE}, s[60:61] sc0 sc1")
            A("s_mov_b64 exec, -1")
            A(f"s_lshl_b32 s{ST+d}, s{ST+d}, 13")
        else:
            A(f"s_add_u32 s{ST+d}, s{ST+d}, {4*D*8192}")
        kload(d)
        A(f"v_max3_f32 v{T0}, v{S}, v{S+1}, v{S+2}")
        A(f"v_max3_f32 v{T1}, v{S+3}, v{S+4}, v{S+5}")
        A(f"v_max3_f32 v{T0}, v{S+6}, v{S+7}, v{T0}")
        A(f"v_max3_f32 v{T0}, v{T0}, v{T1}, v{M_}")
        A(f"v_mov_b32 v{T1}, v{T0}")
        nop(2)
        A(f"v_permlane32_swap_b32 v{T0}, v{T1}")
        A(f"v_max_f32 v{T0}, v{T0}, v{T1}")
        A(f"v_mov_b32 v{T1}, v{T0}")
        nop(2)
        A(f"v_permlane16_swap_b32 v{T0}, v{T1}")
        A(f"v_max_f32 v{M_}, v{T0}, v{T1}")
        A(f"v_mul_f32 v{T0}, s42, v{M_}")
        A(f"v_sub_f32 v{AL}, v{MC}, v{T0}")
        A(f"v_mov_b32 v{MC}, v{T0}")
        A(f"v_exp_f32 v{AL}, v{AL}")
        for i in range(8): A(f"v_fma_f32 v{S+i}, v{S+i}, s42, -v{MC}")
        for i in range(8): A(f"v_exp_f32 v{S+i}, v{S+i}")
        for i in range(32): A(f"v_mul_f32 v{O+i}, v{O+i}, v{AL}")
        A(f"v_add_f32 v{T0}, v{S}, v{S+1}"); A(f"v_add_f32 v{T1}, v{S+2}, v{S+3}")
        A(f"v_add_f32 v{T0}, v{T0}, v{S+4}"); A(f"v_add_f32 v{T1}, v{T1}, v{S+5}")
        A(f"v_add_f32 v{T0}, v{T0}, v{S+6}"); A(f"v_add_f32 v{T1}, v{T1}, v{S+7}")
        A(f"v_add_f32 v{T0}, v{T0}, v{T1}")
        A(f"v_fma_f32 v{LS}, v{LS}, v{AL}, v{T0}")
        for p in range(4): A(f"v_cvt_pk_bf16_f32 v{S+p}, v{S+2*p}, v{S+2*p+1}")
        A(f"s_waitcnt vmcnt({nv})")
        transpose_mfma(VR + d*32, T, O, f"v[{S}:{S+3}]")
        vload(d)
    A("s_branch L_loop")
    A("L_loopdone:")
    stamp(3)
    if hint:
        A("s_cmp_lg_u32 s33, 0"); A("s_cbranch_scc1 L_nohint")
        A("s_lshl_b32 s37, s31, 7"); A("s_and_b32 s38, s52, 15"); A("s_lshl_b32 s38, s38, 2"); A("s_add_u32 s37, s37, s38")
        A(f"s_add_u32 s37, s37, {WS_HINT:#x}")
        A("s_mov_b64 exec, 1")
        A(f"buffer_store_dword v{ZERO}, v{ZERO}, s[20:23], s37 offen sc1")
        A("s_mov_b64 exec, -1")
        A("L_nohint:")
    A(f"v_mov_b32 v{T1}, v{LS}"); nop(2)
    A(f"v_permlane32_swap_b32 v{LS}, v{T1}"); A(f"v_add_f32 v{LS}, v{LS}, v{T1}")
    A(f"v_mov_b32 v{T1}, v{LS}"); nop(2)
    A(f"v_permlane16_swap_b32 v{LS}, v{T1}"); A(f"v_add_f32 v13, v{LS}, v{T1}")
    A(f"v_mov_b32 v12, v{MC}")
    A("v_and_b32 v8, 3, v0"); A("v_lshlrev_b32 v9, 9, v8")
    A("v_lshrrev_b32 v10, 4, v0"); A("v_lshl_add_u32 v9, v10, 4, v9")
    A("s_lshl_b32 s37, s33, 11"); A("v_add_u32 v9, s37, v9")
    A("s_lshl_b32 s37, s33, 5"); A("v_lshl_add_u32 v8, v8, 3, s37")
    A("v_and_b32 v10, 12, v0"); A("v_cmp_eq_u32 vcc, 0, v10")
    A("s_and_saveexec_b64 s[38:39], vcc")
    for jd in range(8):
        A(f"ds_write_b128 v9, v[{O+jd*4}:{O+jd*4+3}] offset:{L_O + jd*64}")
    A(f"ds_write_b64 v8, v[12:13] offset:{L_ML}")
    A("s_mov_b64 exec, s[38:39]")
    A("v_and_b32 v8, 1, v0"); A("v_lshlrev_b32 v8, 8, v8")
    A("v_bfe_u32 v9, v0, 1, 4"); A("v_lshl_add_u32 v8, v9, 2, v8")
    A("s_lshl_b32 s37, s33, 9"); A(f"s_add_u32 s37, s37, {L_O}"); A("v_add_u32 v8, s37, v8")
    A("s_lshl_b32 s37, s33, 3"); A("v_mov_b32 v9, s37")
    A("s_waitcnt lgkmcnt(0)")
    for w in range(1, 4): A(f"v_add_u32 v{9+w}, {w*2048}, v8")
    A(f"s_mul_i32 s38, s52, {PSTR}"); A("s_mul_i32 s39, s33, 528"); A("s_add_u32 s38, s38, s39"); A(f"s_add_u32 s38, s38, {WS_PO:#x}")
    A("v_lshlrev_b32 v14, 4, v0")
    A("s_barrier")
    stamp(4)
    for w in range(4):
        a = 8 if w == 0 else 9 + w
        A(f"ds_read_b64 v[{48+w*2}:{49+w*2}], v9 offset:{L_ML+w*32}")
        A(f"ds_read2_b32 v[{16+w*4}:{17+w*4}], v{a} offset0:0 offset1:16")
        A(f"ds_read2_b32 v[{18+w*4}:{19+w*4}], v{a} offset0:32 offset1:48")
    A("s_waitcnt lgkmcnt(0)")
    A("v_max3_f32 v32, v48, v50, v52"); A("v_max_f32 v32, v32, v54")
    for w in range(4): A(f"v_sub_f32 v{34+w}, v{48+w*2}, v32")
    for w in range(4): A(f"v_exp_f32 v{34+w}, v{34+w}")
    A("v_cmp_eq_u32 vcc, 32, v0")
    for i in range(4): A(f"v_mul_f32 v{40+i}, v{16+i}, v34")
    A("v_mul_f32 v33, v49, v34")
    for w in range(1, 4):
        for i in range(4): A(f"v_fmac_f32 v{40+i}, v{16+w*4+i}, v{34+w}")
        A(f"v_fmac_f32 v33, v{49+w*2}, v{34+w}")
    A("v_cndmask_b32 v40, v40, v32, vcc"); A("v_cndmask_b32 v41, v41, v33, vcc")
    for i in range(4): A(f"v_min_u32 v{40+i}, -2, v{40+i}")
    A("s_mov_b32 exec_lo, -1"); A("s_mov_b32 exec_hi, 1")
    A("buffer_store_dwordx4 v[40:43], v14, s[20:23], s38 offen sc1")
    A("s_mov_b64 exec, -1")
    stamp(5)
    A("v_lshrrev_b32 v4, 4, v0"); A("v_mul_u32_u24 v5, 528, v4")
    A("v_and_b32 v4, 15, v0"); A("v_lshl_add_u32 v4, v4, 5, v5")
    A("s_lshl_b32 s37, s31, 4"); A("s_lshl_b32 s38, s33, 2"); A("s_add_u32 s37, s37, s38")
    A(f"s_mul_i32 s56, s37, {PSTR}"); A(f"s_add_u32 s56, s56, {WS_PO:#x}")
    for sp in range(1, 4): A(f"s_add_u32 s{56+sp}, s56, {sp*PSTR}")
    A(f"s_mov_b32 s64, {SPIN}")
    if hint: A("s_barrier")
    stamp(6)
    A("L_poll1:")
    for sp in range(4):
        A(f"buffer_load_dwordx2 v[{8+sp*2}:{9+sp*2}], v5, s[20:23], s{56+sp} offen offset:512 sc1")
        A(f"buffer_load_dwordx4 v[{16+sp*8}:{19+sp*8}], v4, s[20:23], s{56+sp} offen sc1")
        A(f"buffer_load_dwordx4 v[{20+sp*8}:{23+sp*8}], v4, s[20:23], s{56+sp} offen offset:16 sc1")
    A("s_waitcnt vmcnt(0)")
    A("v_max3_u32 v6, v8, v9, v10")
    for i in range(11, 47, 2): A(f"v_max3_u32 v6, v6, v{i}, v{i+1}")
    A("v_max_u32 v6, v6, v47")
    A("v_cmp_eq_u32 vcc, -1, v6")
    A("v_max3_f32 v48, v8, v10, v12"); A("v_max_f32 v48, v48, v14")
    for sp in range(4): A(f"v_sub_f32 v{50+sp}, v{8+sp*2}, v48")
    for sp in range(4): A(f"v_exp_f32 v{50+sp}, v{50+sp}")
    nop(1)
    A("v_mul_f32 v49, v9, v50")
    for sp in range(1, 4): A(f"v_fmac_f32 v49, v{9+sp*2}, v{50+sp}")
    A("v_rcp_f32 v49, v49")
    nop(1)
    for sp in range(4): A(f"v_mul_f32 v{50+sp}, v{50+sp}, v49")
    for i in range(8): A(f"v_mul_f32 v{56+i}, v{16+i}, v50")
    for sp in range(1, 4):
        for i in range(8): A(f"v_fmac_f32 v{56+i}, v{16+sp*8+i}, v{50+sp}")
    for p in range(4): A(f"v_cvt_pk_bf16_f32 v{64+p}, v{56+2*p}, v{57+2*p}")
    A("s_cbranch_vccz L_got1")
    A("s_sub_u32 s64, s64, 1"); A("s_cmp_lg_u32 s64, 0"); A("s_cbranch_scc1 L_poll1")
    A("L_got1:")
    A("s_lshl_b32 s37, s33, 10"); A("v_lshl_add_u32 v4, v0, 4, s37")
    A(f"ds_write_b128 v4, v[64:67] offset:{L_OB}")
    stamp(7)
    A("s_waitcnt lgkmcnt(0)")
    A("s_barrier")
    if diag:
        A("s_cmp_lg_u32 s33, 0"); A("s_cbranch_scc1 L_end")
        stamps_out(8, 0, "s43")
    A("s_endpgm")

    B = [16 + 32*i for i in range(5)]
    XA = 0
    def proj_voff(vd, t1, rowstride):
        sh = int(math.log2(rowstride))
        A(f"v_bfe_u32 v{vd}, v0, 2, 2"); A(f"v_lshlrev_b32 v{vd}, {5+sh}, v{vd}")
        A(f"v_lshrrev_b32 v{t1}, 4, v0"); A(f"v_lshl_add_u32 v{vd}, v{t1}, {3+sh}, v{vd}")
        A(f"v_and_b32 v{t1}, 3, v0"); A(f"v_lshl_add_u32 v{vd}, v{t1}, 4, v{vd}")
    def proj_load(voff, srdr, sbase, stmp, rowstride, flags=""):
        for rho in range(4):
            for e in range(8):
                off = (rho * 128 + e) * rowstride
                r = B[rho+1] + e * 4
                hi = off & ~0xfff; lo = off & 0xfff
                if hi == 0: so = f"s{sbase}"
                else:
                    if lo == 0: A(f"s_add_u32 s{stmp}, s{sbase}, {hi:#x}")
                    so = f"s{stmp}"
                A(f"buffer_load_dwordx4 v[{r}:{r+3}], v{voff}, s[{srdr}:{srdr+3}], {so} offen offset:{lo}{flags}")
    A("L_helper:")
    A("s_setprio 3")
    proj_voff(1, 2, 8192)
    A("v_and_b32 v3, 3, v0"); A("v_lshlrev_b32 v3, 10, v3")
    A("v_bfe_u32 v2, v0, 2, 2"); A("v_lshl_add_u32 v3, v2, 6, v3")
    A("v_lshrrev_b32 v2, 4, v0"); A("v_lshl_add_u32 v3, v2, 4, v3")
    A("s_lshl_b32 s36, s29, 10"); A("s_lshl_b32 s37, s30, 6"); A("s_add_u32 s36, s36, s37")
    A("s_waitcnt lgkmcnt(0)")
    srd(12, 4, 5, 4096); srd(16, 10, 11, 4 << 20); srd(20, 46, 47, WS_USED)
    for rho in range(4):
        A(f"buffer_load_dwordx4 a[{XA+rho*4}:{XA+rho*4+3}], v3, s[12:15], 0 offen offset:{rho*256}")
    proj_load(1, 16, 36, 37, 8192)
    if seq: A("s_barrier")
    stamp(1)
    for i in range(4): A(f"v_mov_b32 v{4+i}, -1")
    A("v_lshlrev_b32 v2, 4, v0")
    A(f"s_mul_i32 s38, s52, {PSTR}"); A(f"s_add_u32 s38, s38, {WS_PO:#x}")
    A("buffer_store_dwordx4 v[4:7], v2, s[20:23], s38 offen sc1")
    A("buffer_store_dwordx4 v[4:7], v2, s[20:23], s38 offen offset:1024 sc1")
    A("s_lshl_b32 s53, s28, 4"); A("s_add_u32 s53, s53, s30"); A("s_lshl_b32 s53, s53, 12"); A(f"s_add_u32 s53, s53, {WS_OP:#x}")
    A("s_lshl_b32 s54, s29, 9"); A("s_add_u32 s54, s54, s53")
    A("s_mov_b64 exec, 15")
    A("buffer_store_dwordx4 v[4:7], v2, s[20:23], s38 offen offset:2048 sc1")
    A("s_mov_b32 exec_lo, -1")
    A("buffer_store_dwordx4 v[4:7], v2, s[20:23], s54 offen sc1")
    A("s_mov_b64 exec, 1")
    A("s_lshl_b32 s63, s31, 7"); A(f"s_add_u32 s63, s63, {WS_HINT:#x}")
    A("s_and_b32 s38, s52, 15"); A("s_lshl_b32 s38, s38, 2"); A("s_add_u32 s38, s38, s63")
    A("buffer_store_dword v4, v2, s[20:23], s38 offen sc1")
    A(f"v_mov_b32 v8, {32*D}")
    A("buffer_store_dword v8, v2, s[20:23], s62 offen sc1")
    A("s_mov_b64 exec, -1")
    if diag:
        A("s_waitcnt vmcnt(38)"); stamp(10); A("s_waitcnt vmcnt(30)"); stamp(11); A("s_waitcnt vmcnt(6)"); stamp(12)
        A("s_waitcnt lgkmcnt(0)")
    A("s_call_b64 s[60:61], L_transpose6")
    A("s_call_b64 s[60:61], L_mfma_reduce")
    A("v_cvt_pk_bf16_f32 v6, v6, v7")
    A("v_lshrrev_b32 v4, 4, v0"); A("v_lshlrev_b32 v4, 13, v4")
    A("v_and_b32 v5, 15, v0"); A("v_lshl_add_u32 v4, v5, 2, v4")
    A("s_lshl_b32 s37, s28, 15"); A("s_add_u32 s36, s36, s37")
    A(f"buffer_store_dword v6, v4, s[20:23], s36 offen offset:{WS_Q} sc1")
    stamp(2)
    srd(24, 50, 51, 256)
    A("v_mov_b32 v4, 0"); A("v_mov_b32 v5, 1")
    A("s_lshl_b32 s37, s31, 4")
    A("s_waitcnt vmcnt(0)")
    A("s_mov_b64 exec, 1")
    A("buffer_store_byte v5, v4, s[24:27], s52 offen sc1")
    A("s_mov_b64 exec, -1")
    stamp(3)
    A("v_and_b32 v8, 3, v0"); A("v_lshlrev_b32 v8, 8, v8")
    A("v_lshrrev_b32 v9, 4, v0"); A("v_lshl_add_u32 v8, v9, 4, v8")
    A("s_lshl_b32 s38, s28, 15"); A("s_lshl_b32 s39, s34, 13"); A("s_add_u32 s38, s38, s39")
    A("s_lshl_b32 s39, s29, 10"); A("s_add_u32 s38, s38, s39")
    A(f"s_mov_b32 s64, {SPIN}")
    A("s_mov_b32 s55, 0x01010101")
    A("s_waitcnt vmcnt(0)")
    stamp(4)
    A("buffer_load_dwordx4 v[12:15], v4, s[24:27], s37 offen sc1")
    if seq: A("s_barrier")
    A("s_branch L_pollq2")
    A("L_pollq:")
    A("buffer_load_dwordx4 v[12:15], v4, s[24:27], s37 offen sc1")
    A("L_pollq2:")
    A("s_waitcnt vmcnt(0)")
    A("v_and_b32 v12, v12, v13"); A("v_and_b32 v14, v14, v15"); A("v_and_b32 v12, v12, v14")
    A("v_cmp_ne_u32 vcc, s55, v12")
    A("s_cbranch_vccz L_gotq")
    A("s_sub_u32 s64, s64, 1"); A("s_cmp_lg_u32 s64, 0"); A("s_cbranch_scc1 L_pollq")
    A("L_gotq:")
    stamp(5)
    for g in range(4):
        A(f"buffer_load_dwordx4 v[{16+g*4}:{19+g*4}], v8, s[20:23], s38 offen offset:{WS_Q + g*64} sc1")
    if seq: A("s_barrier")
    A("v_lshlrev_b32 v9, 4, v0")
    for g in range(4):
        A(f"s_waitcnt vmcnt({3-g})")
        A(f"ds_write_b128 v9, v[{16+g*4}:{19+g*4}] offset:{L_Q + g*1024}")
    A("s_waitcnt lgkmcnt(0)")
    A("s_barrier")
    stamp(6)
    if diag: A(f"s_sub_u32 s43, {SPIN}, s64")
    A("s_setprio 0")
    srd(16, 44, 45, 4 << 20)
    proj_voff(1, 2, 1024)
    A("s_lshl_b32 s36, s29, 19"); A("s_lshl_b32 s37, s30, 6"); A("s_add_u32 s36, s36, s37")
    proj_load(1, 16, 36, 37, 1024)
    A("s_waitcnt vmcnt(0)")
    A("s_call_b64 s[60:61], L_transpose6")
    A("v_lshlrev_b32 v4, 2, v0"); A("v_and_b32 v4, 127, v4")
    A("s_lshl_b32 s37, s28, 7")
    A(f"s_mov_b32 s64, {SPIN}")
    A("L_pollf:")
    A("buffer_load_dword v12, v4, s[24:27], s37 offen sc1")
    A("s_waitcnt vmcnt(0)")
    A("v_cmp_ne_u32 vcc, s55, v12")
    A("s_cbranch_vccz L_gotf")
    A("s_sleep 8")
    A("s_sub_u32 s64, s64, 1"); A("s_cmp_lg_u32 s64, 0"); A("s_cbranch_scc1 L_pollf")
    A("L_gotf:")
    srd(12, 48, 49, 8192)
    A("v_and_b32 v4, 63, v4")
    A(f"s_mov_b32 s64, {SPIN}")
    A("s_setprio 3")
    A("s_barrier")
    if hint:
        A("L_pollh:")
        A("buffer_load_dword v12, v4, s[20:23], s63 offen sc1")
        A("s_waitcnt vmcnt(0)")
        A("v_cmp_ne_u32 vcc, 0, v12")
        A("s_cbranch_vccz L_goth")
        A("s_sleep 2")
        A("s_sub_u32 s64, s64, 1"); A("s_cmp_lg_u32 s64, 0"); A("s_cbranch_scc1 L_pollh")
        A("L_goth:")
        A("s_barrier")
    A("s_barrier")
    stamp(7)
    for rho in range(4):
        A(f"ds_read_b128 a[{XA+rho*4}:{XA+rho*4+3}], v3 offset:{L_OB + rho*256}")
    A("s_waitcnt lgkmcnt(0)")
    A("s_call_b64 s[60:61], L_mfma_reduce")
    A("v_min_u32 v6, -2, v6"); A("v_min_u32 v7, -2, v7")
    A("v_lshlrev_b32 v4, 3, v0")
    A("buffer_store_dwordx2 v[6:7], v4, s[20:23], s54 offen sc1")
    stamp(8)
    A("s_and_b32 s37, s30, 7"); A("s_cmp_lg_u32 s37, s29"); A("s_cbranch_scc1 L_hdone")
    A("v_lshrrev_b32 v5, 4, v0"); A("v_lshlrev_b32 v5, 11, v5")
    A("v_and_b32 v6, 15, v0"); A("v_lshl_add_u32 v5, v6, 2, v5")
    A("s_lshl_b32 s38, s28, 4"); A("s_add_u32 s38, s38, s30"); A("s_lshl_b32 s38, s38, 6")
    A(f"s_mov_b32 s64, {SPIN}")
    A("L_poll2:")
    for k in range(8):
        A(f"buffer_load_dwordx2 v[{16+k*2}:{17+k*2}], v4, s[20:23], s53 offen offset:{k*512} sc1")
    A("s_waitcnt vmcnt(0)")
    A("v_max3_u32 v6, v16, v17, v18")
    for i in range(19, 31, 2): A(f"v_max3_u32 v6, v6, v{i}, v{i+1}")
    A("v_max_u32 v6, v6, v31")
    A("v_cmp_eq_u32 vcc, -1, v6")
    for k in range(1, 8):
        A(f"v_add_f32 v16, v16, v{16+k*2}"); A(f"v_add_f32 v17, v17, v{17+k*2}")
    A("v_cvt_pk_bf16_f32 v16, v16, v17")
    A("s_cbranch_vccz L_got2")
    A("s_sub_u32 s64, s64, 1"); A("s_cmp_lg_u32 s64, 0"); A("s_cbranch_scc1 L_poll2")
    A("L_got2:")
    A("buffer_store_dword v16, v5, s[12:15], s38 offen")
    A("L_hdone:")
    stamp(9)
    stamps_out(13, 1, "s43")
    A("L_end:")
    A("s_endpgm")

    A("L_transpose6:")
    for rho in range(4):
        A(f"s_waitcnt vmcnt({30 - rho*8})")
        src = B[rho+1]; dst = B[rho]
        for w in range(4):
            for p in range(4):
                A(f"v_perm_b32 v{dst+(2*w)*4+p}, v{src+(2*p+1)*4+w}, v{src+(2*p)*4+w}, s40")
                A(f"v_perm_b32 v{dst+(2*w+1)*4+p}, v{src+(2*p+1)*4+w}, v{src+(2*p)*4+w}, s41")
    A("s_setpc_b64 s[60:61]")
    A("L_mfma_reduce:")
    ACC = B[4]
    nop(1)
    for rho in range(4):
        for jn in range(8):
            a = ACC + jn*4; t = B[rho] + jn*4
            c = "0" if rho == 0 else f"v[{a}:{a+3}]"
            A(f"v_mfma_f32_16x16x32_bf16 v[{a}:{a+3}], v[{t}:{t+3}], a[{XA+rho*4}:{XA+rho*4+3}], {c}")
    t = 4
    A(f"v_lshrrev_b32 v{t}, 4, v0"); A(f"v_bfe_u32 v{t+1}, v0, 2, 2")
    A(f"v_cmp_eq_u32 vcc, v{t}, v{t+1}")
    A(f"v_lshlrev_b32 v{t}, 9, v{t}"); A(f"v_and_b32 v{t+1}, 3, v0"); A(f"v_lshl_add_u32 v{t}, v{t+1}, 7, v{t}")
    nop(3)
    A("s_and_saveexec_b64 s[38:39], vcc")
    for jn in range(8):
        A(f"ds_write_b128 v{t}, v[{ACC+jn*4}:{ACC+jn*4+3}] offset:{L_RED + jn*16}")
    A("s_mov_b64 exec, s[38:39]")
    A(f"v_lshrrev_b32 v{t}, 4, v0"); A(f"v_lshlrev_b32 v{t}, 7, v{t}")
    A(f"v_and_b32 v{t+1}, 3, v0"); A(f"v_lshl_add_u32 v{t}, v{t+1}, 5, v{t}")
    A(f"v_bfe_u32 v{t+1}, v0, 2, 2"); A(f"v_lshl_add_u32 v{t}, v{t+1}, 2, v{t}")
    A(f"v_add_u32 v{t}, {L_RED}, v{t}"); A(f"v_add_u32 v{t+1}, 1024, v{t}")
    A("s_waitcnt lgkmcnt(0)")
    A(f"ds_read2_b32 v[{t+2}:{t+3}], v{t} offset0:0 offset1:4")
    A(f"ds_read2_b32 v[{t+4}:{t+5}], v{t} offset0:128 offset1:132")
    A(f"ds_read2_b32 v[{t+6}:{t+7}], v{t+1} offset0:0 offset1:4")
    A(f"ds_read2_b32 v[{t+8}:{t+9}], v{t+1} offset0:128 offset1:132")
    A("s_waitcnt lgkmcnt(0)")
    A(f"v_add_f32 v{t+2}, v{t+2}, v{t+4}"); A(f"v_add_f32 v{t+3}, v{t+3}, v{t+5}")
    A(f"v_add_f32 v{t+6}, v{t+6}, v{t+8}"); A(f"v_add_f32 v{t+7}, v{t+7}, v{t+9}")
    A(f"v_add_f32 v{t+2}, v{t+2}, v{t+6}"); A(f"v_add_f32 v{t+3}, v{t+3}, v{t+7}")
    A("s_setpc_b64 s[60:61]")
    for i in range(300): A("s_nop 0")

    A('.section .rodata,"a"'); A(".p2align 6"); A(f".amdhsa_kernel {NAME}_kernel")
    A("  .amdhsa_next_free_vgpr 256"); A("  .amdhsa_next_free_sgpr 96"); A("  .amdhsa_accum_offset 176")
    A("  .amdhsa_group_segment_fixed_size 0"); A("  .amdhsa_kernarg_size 104"); A("  .amdhsa_user_sgpr_count 2")
    A("  .amdhsa_user_sgpr_kernarg_segment_ptr 1"); A("  .amdhsa_system_sgpr_workgroup_id_x 1"); A(".end_amdhsa_kernel")
    return "\n".join(L) + "\n"

if __name__ == "__main__":
    open("v3.s", "w").write(gen(False))
    open("v3d.s", "w").write(gen(True))
    open("v3s.s", "w").write(gen(False, dyn=False))
    open("v3sd.s", "w").write(gen(True, dyn=False))
```

```python
import sys, math, struct
NAME = "concat_heads__gqa_block_cached__gqa_block_cached__decode"
def f2u(x): return struct.unpack("<I", struct.pack("<f", x))[0]
CSC = f2u(math.log2(math.e) / math.sqrt(128.0))

WS_Q = 0
WS_EPOCH = 0x20000
WS_PG = 0x30000; PGS = 1152
WS_DIAG = 0xC0000
WS_OP = 0x100000
WS_PO = 0x200000; PSTR = 2048 + 128; HPS = 512; BSTR = 256 * PSTR
WS_ML = 0x24000
WS_F2 = 0xD0000; WS_F1 = 0xE4000
NEG = f2u(-3.0e38); NEGC = f2u(-3.0e38 * math.log2(math.e) / math.sqrt(128.0))
WS_USED = 0x340000
L_Q = 0; L_TK = 2048; L_TAG = L_TK + 4; L_FU = L_TK + 8; L_QF = L_TK + 16; L_CNT = L_TK + 24
L_W = L_TK + 32; L_MX = L_TK + 64; L_LA = L_MX + 128; L_OB = 2560; L_RED = 3584; L_OA = 6144; L_S = L_OA + 16384; L_XB = L_S + 65536
L_R2 = L_S
SPIN = 1 << 20
KTAG = 0x9E3779B1

def gen(diag=False, N0=2, EV=((64,"b"),(80,"p0"),(112,"g0"),(128,"b"),(192,"b"),(205,"p1"),(214,"b"),(222,"g1"),(230,"b"),(242,"b")), TH=20, KAP=31, XR=1, N2=16, PS=0, F2=None, F1=None, F1W=3, F1M=0):
    XL = 0; PRE = 0; DEFB = False; TCH = 0; P2INIT = 0; ACK1 = ACK2 = True; WOE = WOB = NOWO = False; WOH = 0
    L = []
    NX = XL + XR
    L_TOT = L_XB
    def A(s): L.append(s)
    def C(s): L.append("; " + s)
    def nop(n):
        while n > 0:
            k = min(n, 16); A(f"s_nop {k-1}"); n -= k
    def srd(d, lo, hi, nbytes):
        A(f"s_mov_b32 s{d}, s{lo}"); A(f"s_mov_b32 s{d+1}, s{hi}")
        A(f"s_mov_b32 s{d+2}, {nbytes:#x}"); A(f"s_mov_b32 s{d+3}, 0x20000")
    def stamp(i):
        if diag: A(f"s_memrealtime s[{66+2*i}:{67+2*i}]")
    def stamps_out(n, role, extra=None):
        if diag:
            A("s_waitcnt lgkmcnt(0)")
            A("s_mov_b64 exec, 1")
            A("s_lshl_b32 s37, s2, 7"); A(f"s_add_u32 s37, s37, {WS_DIAG + role*64:#x}")
            A("v_mov_b32 v1, 0")
            for i in range(n):
                A(f"v_mov_b32 v2, s{66+2*i}")
                A(f"buffer_store_dword v2, v1, s[20:23], s37 offen offset:{i*4}")
            if extra:
                A(f"v_mov_b32 v2, {extra}")
                A(f"buffer_store_dword v2, v1, s[20:23], s37 offen offset:56")
            A("s_getreg_b32 s38, hwreg(HW_REG_XCC_ID)")
            A("v_mov_b32 v2, s38")
            A(f"buffer_store_dword v2, v1, s[20:23], s37 offen offset:60")
    def spin(label):
        A("s_sub_u32 s64, s64, 1"); A("s_cmp_gt_i32 s64, 0"); A(f"s_cbranch_scc1 {label}")
    def transpose(src, dst):
        for w in range(4):
            for p in range(4):
                A(f"v_perm_b32 v{dst+(2*w)*4+p}, v{src+(2*p+1)*4+w}, v{src+(2*p)*4+w}, s40")
                A(f"v_perm_b32 v{dst+(2*w+1)*4+p}, v{src+(2*p+1)*4+w}, v{src+(2*p)*4+w}, s41")
    ROR = lambda k: f"row_ror:{k} row_mask:0xf bank_mask:0xf"
    ROR8 = ROR(8)

    A(f"; @launch grid=(256,1,1) block=(320,1,1) lds={L_TOT}")
    for line in HEADER.strip().splitlines(): C(line)
    A('.amdgcn_target "amdgcn-amd-amdhsa--gfx950"')
    A(".text")
    A(f".globl {NAME}_kernel"); A(".p2align 8"); A(f".type {NAME}_kernel,@function"); A(f"{NAME}_kernel:")
    A("s_cmp_ge_u32 s2, 256"); A("s_cbranch_scc1 L_end")
    stamp(0)
    C("s28 = block of the weight role, s29 = kv head, s30 = weight slice, s34 = batch, s35 = split, s31 = kvh*4+b, s32 = own slot")
    A("s_bfe_u32 s28, s2, 0x10001")
    A("s_mul_i32 s32, s28, 40")
    A("s_load_dwordx2 s[16:17], s[0:1], s32")
    A("s_add_u32 s32, s32, 24")
    A("s_load_dwordx4 s[44:47], s[0:1], s32")
    A("s_load_dwordx2 s[20:21], s[0:1], 96")
    A("s_load_dwordx4 s[4:7], s[0:1], 8")
    A("s_load_dwordx4 s[8:11], s[0:1], 48")
    A("s_load_dwordx2 s[48:49], s[0:1], 80")
    A("v_lshrrev_b32 v1, 6, v0")
    A("v_and_b32 v0, 63, v0")
    A("v_readfirstlane_b32 s33, v1")
    A("s_lshr_b32 s34, s2, 6")
    A("s_bfe_u32 s29, s2, 0x20004"); A("s_lshl_b32 s29, s29, 1"); A("s_bfe_u32 s36, s2, 0x10002"); A("s_add_u32 s29, s29, s36")
    A("s_bfe_u32 s37, s2, 0x10003")
    A("s_and_b32 s35, s2, 3"); A("s_lshl_b32 s35, s35, 1"); A("s_add_u32 s35, s35, s37")
    A("s_and_b32 s30, s35, 3"); A("s_lshl_b32 s36, s34, 2"); A("s_add_u32 s30, s30, s36")
    A("s_lshl_b32 s31, s29, 2"); A("s_add_u32 s31, s31, s34")
    A("s_lshl_b32 s32, s31, 3"); A("s_add_u32 s32, s32, s35"); A(f"s_mul_i32 s32, s32, {PSTR}"); A(f"s_add_u32 s32, s32, {WS_PO:#x}")
    A("s_mov_b32 s40, 0x05040100"); A("s_mov_b32 s41, 0x07060302")
    A(f"s_mov_b32 s64, {SPIN}")
    A(f"s_mov_b32 s22, {WS_USED:#x}"); A("s_mov_b32 s23, 0x20000")
    A("s_cmp_lg_u32 s33, 0"); A("s_cbranch_scc1 L_stream")

    C("=============== helper wave: q projection slice, q hand-off, load balancing ===============")
    B = [16 + 32*i for i in range(5)]
    X = 176
    A("s_setprio 3")
    A("v_bfe_u32 v1, v0, 2, 2"); A("v_lshlrev_b32 v1, 18, v1")
    A("v_lshrrev_b32 v2, 4, v0"); A("v_lshl_add_u32 v1, v2, 16, v1")
    A("v_and_b32 v2, 3, v0"); A("v_lshl_add_u32 v1, v2, 4, v1")
    A("v_lshlrev_b32 v3, 10, v2")
    A("v_bfe_u32 v2, v0, 2, 2"); A("v_lshl_add_u32 v3, v2, 6, v3")
    A("v_lshrrev_b32 v2, 4, v0"); A("v_lshl_add_u32 v3, v2, 4, v3")
    A("s_lshl_b32 s56, s29, 10"); A("s_lshl_b32 s37, s30, 6"); A("s_add_u32 s56, s56, s37")
    A("v_mov_b32 v14, 0"); A("v_mov_b32 v8, 0"); A("v_mov_b32 v9, 0"); A("v_mov_b32 v10, 0"); A("v_mov_b32 v11, 0")
    A(f"ds_write_b128 v14, v[8:11] offset:{L_QF}")
    A(f"ds_write_b64 v14, v[8:9] offset:{L_FU}")
    for i in range(4): A(f"v_mov_b32 v{192+i}, -1")
    A("v_lshlrev_b32 v2, 4, v0"); A("v_lshlrev_b32 v13, 3, v0"); A("v_mov_b32 v8, 1")
    A(f"s_add_u32 s39, s32, {BSTR:#x}")
    A(f"s_mov_b32 s37, {WS_EPOCH:#x}")
    A("s_lshl_b32 s38, s31, 11"); A("s_mov_b32 s54, 0")
    A("s_mov_b32 s18, 4096"); A("s_mov_b32 s19, 0x20000"); A("s_mov_b32 s14, 0x400000"); A("s_mov_b32 s15, 0x20000")
    A("s_waitcnt lgkmcnt(0)")
    A("s_mov_b32 s12, s44"); A("s_mov_b32 s13, s45")
    C("hand-off tag of the previous launch: only used to tell this launch's hand-offs from older ones")
    A("buffer_load_dword v15, v14, s[20:23], s37 offen sc1")
    def taginit(n):
        A(f"s_waitcnt vmcnt({n})")
        A(f"v_add_u32 v15, {KTAG:#x}, v15")
        A(f"v_mov_b32 v10, {16 + 4*NX}"); A("v_mov_b32 v11, v15")
        A("v_readfirstlane_b32 s55, v15")
        A(f"ds_write_b64 v14, v[10:11] offset:{L_TK}")
    if DEFB:
        C("q of block B is not needed yet: its producers let the cache stream start and project later")
        A("s_cmp_eq_u32 s28, 0"); A("s_cbranch_scc1 L_qproj")
        A("s_barrier")
        taginit(0)
        if DEFB > 1: A(f"s_sleep {DEFB}")
        A("s_branch L_pollq")
    A("L_qproj:")
    for rho in range(4):
        A(f"buffer_load_dwordx4 v[{X+rho*4}:{X+rho*4+3}], v3, s[16:19], 0 offen offset:{rho*256}")
    for rho in range(4):
        for e in range(8):
            off = (rho * 128 + e) * 8192
            r = B[rho+1] + e * 4
            if off: A(f"s_add_u32 s37, s56, {off:#x}")
            A(f"buffer_load_dwordx4 v[{r}:{r+3}], v1, s[12:15], s{37 if off else 56} offen nt")
    C("mark the two own partial slots as empty")
    for so in (32, 39):
        A(f"buffer_store_dwordx4 v[192:195], v2, s[20:23], s{so} offen sc1")
        A(f"buffer_store_dwordx4 v[192:195], v2, s[20:23], s{so} offen offset:1024 sc1")
    if DEFB: A("s_cmp_lg_u32 s28, 0"); A("s_cbranch_scc1 L_qp2")
    A("s_barrier")
    taginit(40)
    A("L_qp2:")
    stamp(1)
    A("v_lshrrev_b32 v4, 4, v0"); A("v_bfe_u32 v5, v0, 2, 2")
    A("v_cmp_eq_u32 s[58:59], v4, v5")
    A("v_lshlrev_b32 v4, 9, v4"); A("v_and_b32 v5, 3, v0"); A("v_lshl_add_u32 v4, v5, 7, v4")
    A("v_lshrrev_b32 v6, 4, v0"); A("v_lshlrev_b32 v6, 7, v6")
    A("v_lshl_add_u32 v6, v5, 5, v6")
    A("v_bfe_u32 v5, v0, 2, 2"); A("v_lshl_add_u32 v6, v5, 2, v6")
    A(f"v_add_u32 v6, {L_RED}, v6"); A("v_add_u32 v7, 1024, v6")
    A("v_lshrrev_b32 v12, 4, v0"); A("v_lshlrev_b32 v12, 11, v12")
    A("v_and_b32 v5, 15, v0"); A("v_lshl_add_u32 v12, v5, 3, v12")
    A("s_lshl_b32 s36, s28, 3"); A("s_add_u32 s36, s36, s29"); A("s_lshl_b32 s36, s36, 13"); A("s_lshl_b32 s37, s30, 7"); A("s_add_u32 s36, s36, s37")
    ACC = B[4]
    for rho in range(4):
        A(f"s_waitcnt vmcnt({28 - rho*8})")
        if rho == 0: stamp(3)
        if rho == 3: stamp(4)
        transpose(B[rho+1], B[rho])
    nop(1)
    for rho in range(4):
        for jn in range(8):
            a = ACC + jn*4; t = B[rho] + jn*4
            c = "0" if rho == 0 else f"v[{a}:{a+3}]"
            A(f"v_mfma_f32_16x16x32_bf16 v[{a}:{a+3}], v[{t}:{t+3}], v[{X+rho*4}:{X+rho*4+3}], {c}")
    A("s_mov_b64 exec, s[58:59]")
    nop(1)
    for jn in range(8):
        A(f"ds_write_b128 v4, v[{ACC+jn*4}:{ACC+jn*4+3}] offset:{L_RED + jn*16}")
    A("s_mov_b64 exec, -1")
    A("ds_read2_b32 v[16:17], v6 offset0:0 offset1:4")
    A("ds_read2_b32 v[18:19], v6 offset0:128 offset1:132")
    A("ds_read2_b32 v[20:21], v7 offset0:0 offset1:4")
    A("ds_read2_b32 v[22:23], v7 offset0:128 offset1:132")
    A("s_waitcnt lgkmcnt(0)")
    A("v_add_f32 v16, v16, v18"); A("v_add_f32 v17, v17, v19"); A("v_add_f32 v20, v20, v22"); A("v_add_f32 v21, v21, v23")
    A("v_add_f32 v16, v16, v20"); A("v_add_f32 v17, v17, v21")
    A("v_cvt_pk_bf16_f32 v10, v16, v17")
    C("the slots are empty before q is published: whoever sees these granules may trust the slots")
    A("s_waitcnt vmcnt(0)")
    A(f"buffer_store_dwordx2 v[10:11], v12, s[20:23], s36 offen offset:{WS_Q} sc1")
    stamp(2)
    A("s_waitcnt vmcnt(0)")
    A("L_pollq:")
    A(f"buffer_load_dwordx4 v[16:19], v2, s[20:23], s38 offen offset:{WS_Q} sc1")
    A(f"buffer_load_dwordx4 v[20:23], v2, s[20:23], s38 offen offset:{WS_Q+1024} sc1")
    A("s_waitcnt vmcnt(0)")
    A("v_xor_b32 v17, s55, v17"); A("v_xor_b32 v19, s55, v19"); A("v_xor_b32 v21, s55, v21"); A("v_xor_b32 v23, s55, v23")
    A("v_or3_b32 v17, v17, v19, v21"); A("v_or_b32 v17, v17, v23")
    A("v_cmp_ne_u32 vcc, 0, v17")
    A("s_cbranch_vccz L_gotq")
    if DEFB:
        A("s_cmp_eq_u32 s54, 0"); A("s_cbranch_scc1 L_pq2"); A("s_sleep 32"); A("L_pq2:")
    spin("L_pollq")
    A("L_gotq:")
    A(f"ds_write2_b32 v13, v16, v18 offset0:{L_Q//4} offset1:{L_Q//4+1}")
    A(f"ds_write2_b32 v13, v20, v22 offset0:{L_Q//4+128} offset1:{L_Q//4+129}")
    A(f"ds_write_b32 v9, v8 offset:{L_QF}")
    A("s_cmp_lg_u32 s54, 0"); A("s_cbranch_scc1 L_gotw")
    stamp(5); stamp(6)
    if diag: A(f"s_sub_u32 s43, {SPIN}, s64")
    A("s_mov_b32 s54, 1"); A("s_add_u32 s38, s38, 0x10000"); A("v_add_u32 v13, 1024, v13"); A("v_mov_b32 v9, 4")
    if DEFB: A("s_cmp_lg_u32 s28, 0"); A("s_cbranch_scc1 L_qproj")
    A("s_branch L_pollq")
    A("L_gotw:")
    if TCH:
        A("s_lshl_b32 s36, s29, 19"); A("v_mov_b32 v25, s36")
        A("s_mov_b64 exec, 1")
        A("global_load_dword v26, v25, s[46:47] nt")
        A("s_mov_b64 exec, -1")
    if diag: A("s_mov_b32 s57, 128")
    A(f"s_mov_b32 s6, {WS_PG:#x}"); A("s_lshr_b32 s7, s2, 2"); A(f"s_mul_i32 s7, s7, {PGS}"); A("s_and_b32 s36, s2, 3"); A("s_lshl_b32 s36, s36, 2"); A("s_add_u32 s7, s7, s36")
    A("s_bfe_u32 s8, s2, 0x30003"); A(f"s_mul_i32 s8, s8, {PGS}")
    A("s_lshl_b32 s4, s31, 9"); A(f"s_add_u32 s4, s4, {WS_ML:#x}"); A("s_lshl_b32 s5, s35, 6"); A("s_add_u32 s5, s5, s4")
    A(f"s_mov_b32 s42, {CSC:#x}")
    A("v_and_b32 v3, 3, v0"); A("v_lshlrev_b32 v3, 2, v3"); A("v_and_b32 v4, 0x1f0, v2")
    assert sum(k == "b" for _, k in EV) <= 8
    for tk, kind in EV:
        A(f"s_movk_i32 s9, {tk}")
        if kind != "b": A(f"s_mov_b32 s11, {int(kind[1])}")
        if diag: A("s_waitcnt lgkmcnt(0)")
        A(f"s_call_b64 s[58:59], L_ev{kind[0]}")
    A("s_branch L_hdone")
    def waittk(tag):
        A("s_sub_u32 s10, s9, 5")
        A(f"L_prog{tag}:")
        A(f"ds_read_b32 v10, v14 offset:{L_TK}")
        A("s_waitcnt lgkmcnt(0)")
        A("v_readfirstlane_b32 s37, v10")
        if diag:
            for k, th in enumerate((64, 128, 192)):
                A(f"s_cmp_ge_u32 s37, {th}"); A(f"s_cbranch_scc1 L_pg{k}{tag}"); stamp(8 + k); A(f"L_pg{k}{tag}:")
        A("s_cmp_ge_u32 s37, s9"); A(f"s_cbranch_scc1 L_progdone{tag}")
        A("s_cmp_ge_u32 s37, s10"); A(f"s_cbranch_scc1 L_progs{tag}")
        A(f"s_sleep {8 if diag else 16}")
        A(f"L_progs{tag}:")
        A("s_sleep 1")
        spin(f"L_prog{tag}")
        A(f"L_progdone{tag}:")
    C("load balancing (speed only): at a few batch counts publish the time and compare it with 32 other workgroups;")
    C("a workgroup that is behind loads full lines only for a while, which gives it a larger share of the bandwidth")
    A("L_evb:")
    waittk("b")
    QD = [12, 16, 24, 28, 32, 44, 48, 96]
    A("s_memrealtime s[60:61]")
    A("s_add_u32 s36, s6, s7"); A("s_add_u32 s37, s6, s8")
    A("s_add_u32 s62, s20, s37"); A("s_addc_u32 s63, s21, 0")
    A("s_waitcnt lgkmcnt(0)")
    A("v_mov_b32 v20, s60")
    A("s_mov_b64 exec, 1")
    A("buffer_store_dword v20, v14, s[20:23], s36 offen sc1")
    A("s_mov_b64 exec, -1")
    for k, q in enumerate(QD): A(f"s_load_dwordx4 s[{q}:{q+3}], s[62:63], {7*k*PGS:#x} glc")
    A(f"s_add_u32 s6, s6, {64*PGS}"); A("s_mov_b32 s36, 0")
    A("s_waitcnt lgkmcnt(0)")
    A(f"ds_read_b32 v10, v14 offset:{L_TK}")
    for q in QD:
        for i in range(4):
            A(f"s_sub_u32 s37, s60, s{q+i}"); A("s_cmpk_lt_u32 s37, 1000"); A("s_cselect_b32 s37, s37, 0"); A("s_add_u32 s36, s36, s37")
    A("s_lshr_b32 s36, s36, 5"); A(f"s_sub_i32 s36, s36, {TH}"); A("s_max_i32 s36, s36, 0"); A(f"s_mul_i32 s36, s36, {KAP}"); A("s_lshr_b32 s36, s36, 8")
    if diag: A("s_add_u32 s57, s57, s36")
    A("s_waitcnt lgkmcnt(0)")
    A("v_add_u32 v10, s36, v10")
    A(f"ds_write_b32 v14, v10 offset:{L_FU}")
    A("s_setpc_b64 s[58:59]")
    C("maximum and sum of this workgroup's keys, published as two tagged granules per head")
    A("L_evp:")
    waittk("p")
    A("s_lshl_b32 s36, s11, 2"); A("v_mov_b32 v5, s36")
    A("L_evp1:")
    A(f"ds_read_b32 v10, v5 offset:{L_CNT}")
    A("s_waitcnt lgkmcnt(0)")
    A("v_readfirstlane_b32 s37, v10")
    A("s_cmp_ge_u32 s37, 4"); A("s_cbranch_scc1 L_evp2")
    A("s_sleep 2")
    spin("L_evp1")
    A("L_evp2:")
    A("s_lshl_b32 s36, s11, 6"); A(f"s_add_u32 s36, s36, {L_MX}"); A("v_add_u32 v5, s36, v3")
    A("ds_read2_b32 v[16:17], v5 offset0:0 offset1:4"); A("ds_read2_b32 v[18:19], v5 offset0:8 offset1:12")
    A("ds_read2_b32 v[20:21], v5 offset0:32 offset1:36"); A("ds_read2_b32 v[22:23], v5 offset0:40 offset1:44")
    A("s_lshl_b32 s36, s11, 14"); A("s_add_u32 s36, s36, s5")
    A("s_waitcnt lgkmcnt(0)")
    A("v_max3_f32 v24, v16, v17, v18"); A("v_max_f32 v24, v24, v19"); A("v_mul_f32 v24, s42, v24")
    for i in range(4): A(f"v_mul_f32 v{16+i}, s42, v{16+i}")
    for i in range(4): A(f"v_sub_f32 v{16+i}, v{16+i}, v24")
    for i in range(4): A(f"v_exp_f32 v{16+i}, v{16+i}")
    A("v_mov_b32 v25, v15"); A("v_mov_b32 v27, v15")
    A("v_mul_f32 v26, v16, v20")
    for i in range(1, 4): A(f"v_fmac_f32 v26, v{16+i}, v{20+i}")
    A("s_mov_b64 exec, 15")
    A("buffer_store_dwordx4 v[24:27], v2, s[20:23], s36 offen sc1")
    A("s_mov_b64 exec, -1")
    A("s_setpc_b64 s[58:59]")
    C("weight of this workgroup's partial: exp2(M - M*) / L* over the 8 workgroups of the pair")
    A("L_evg:")
    waittk("g")
    A("s_lshl_b32 s36, s11, 14"); A("s_add_u32 s36, s36, s4")
    A("L_evg1:")
    A("buffer_load_dwordx4 v[16:19], v4, s[20:23], s36 offen sc1")
    A("s_waitcnt vmcnt(0)")
    A("v_xor_b32 v17, v15, v17"); A("v_xor_b32 v19, v15, v19"); A("v_or_b32 v17, v17, v19")
    A("v_cmp_ne_u32 vcc, 0, v17")
    A("s_cbranch_vccz L_evg2")
    A("s_sleep 8")
    spin("L_evg1")
    A("L_evg2:")
    def allsp(reg, op):
        A(f"{op}_dpp v{reg}, v{reg}, v{reg} {ROR(4)}"); nop(2)
        A(f"{op}_dpp v{reg}, v{reg}, v{reg} {ROR(8)}")
        A(f"v_mov_b32 v21, v{reg}"); nop(2)
        A(f"v_permlane16_swap_b32 v{reg}, v21"); A(f"{op} v{reg}, v{reg}, v21")
    A("v_mov_b32 v20, v16"); nop(2)
    allsp(20, "v_max_f32")
    A("v_sub_f32 v16, v16, v20"); A("v_sub_f32 v17, v24, v20")
    A("v_exp_f32 v16, v16"); A("v_exp_f32 v17, v17"); nop(1)
    A("v_mul_f32 v18, v18, v16"); nop(2)
    allsp(18, "v_add_f32")
    A("v_rcp_f32 v18, v18")
    A("s_lshl_b32 s36, s11, 4"); A("v_add_u32 v5, s36, v3")
    A("v_mul_f32 v17, v17, v18")
    A(f"ds_write_b32 v5, v17 offset:{L_W}")
    A("s_setpc_b64 s[58:59]")
    A("L_hdone:")
    stamp(7)
    if diag: A("s_lshl_b32 s43, s43, 16"); A("s_add_u32 s43, s43, s57")
    stamps_out(11, 1, "s43")
    A("L_end:")
    A("s_endpgm")

    C("=============== streaming waves ===============")
    S = 8; T = 16; O = 24
    M_, MC, LS, T0, TK, FU, TG, ZERO = 56, 57, 58, 59, 60, 61, 62, 63
    RG = [64, 96, 128, 160]; Q = 192; WR = 208
    LB, LD_, LB2, LD2 = 196, 197, 198, 199
    VB, ONE, SELL, SELH, SLS, SHS, SA, QAD, WOF, FLA = 241, 242, 244, 245, 246, 247, 249, 250, 251, 254
    T1 = 6
    U = [52, 53, 54, 55]
    A("L_stream:")
    A("s_sub_u32 s33, s33, 1")
    C("range: MiB number x + 8y of every cache buffer, 64 KiB chunks alternate with the workgroup 8 further on")
    A("s_and_b32 s36, s2, 7"); A("s_lshr_b32 s37, s2, 4"); A("s_lshl_b32 s37, s37, 3"); A("s_add_u32 s36, s36, s37"); A("s_lshl_b32 s36, s36, 20")
    A("s_bfe_u32 s37, s2, 0x10003"); A("s_lshl_b32 s37, s37, 16"); A("s_add_u32 s36, s36, s37")
    C("K: lane (s, key = (l>>2)&3, u = l&3) holds the 16-byte chunk (s>>1)*8 + (u>>1)*4 + (s&1)*2 + (u&1)")
    A("v_lshrrev_b32 v5, 5, v0"); A("v_lshlrev_b32 v8, 7, v5"); A("v_bfe_u32 v5, v0, 4, 1"); A("v_lshl_add_u32 v8, v5, 5, v8")
    A("v_bfe_u32 v5, v0, 2, 2"); A(f"v_lshl_add_u32 v{LB}, v5, 8, v8")
    A("v_bfe_u32 v5, v0, 1, 1"); A(f"v_lshl_add_u32 v{LB}, v5, 6, v{LB}"); A(f"v_lshlrev_b32 v{LD_}, 10, v5")
    A("v_and_b32 v5, 1, v0"); A(f"v_lshl_add_u32 v{LB}, v5, 4, v{LB}")
    A(f"s_mul_i32 s61, s33, {max(XL,1)*8192}"); A(f"s_add_u32 s61, s61, {L_XB}")
    A("s_mov_b32 s14, 0xf0000"); A("s_mov_b32 s15, 0x20000")
    A("s_waitcnt lgkmcnt(0)")
    A("s_add_u32 s12, s4, s36"); A("s_addc_u32 s13, s5, 0")
    for p in (6, 8, 10):
        A(f"s_add_u32 s{p}, s{p}, s36"); A(f"s_addc_u32 s{p+1}, s{p+1}, 0")
    def tile_off(u):
        A(f"s_bfe_u32 s39, s{u}, 0x30003"); A("s_lshl_b32 s39, s39, 17")
        A(f"s_and_b32 s38, s{u}, 7"); A("s_lshl_b32 s38, s38, 13"); A("s_add_u32 s39, s39, s38")
    def load(r0, half):
        if half:
            A(f"v_add_u32 v2, s39, v{LB}"); A("v_add_u32 v3, 1024, v2")
            A("v_add_u32 v2, v2, v1"); A("v_sub_u32 v3, v3, v1")
            A("v_add_u32 v4, 0x1000, v2"); A("v_add_u32 v5, 0x1000, v3")
            for e in range(8):
                A(f"buffer_load_dwordx4 v[{r0+e*4}:{r0+e*4+3}], v{2 + (e&1) + 2*(e>>2)}, s[12:15], 0 offen offset:{(e&2)*1024} nt")
        else:
            A(f"v_add_u32 v2, s39, v{LB}"); A("v_add_u32 v3, 0x1000, v2")
            for e in range(8):
                A(f"buffer_load_dwordx4 v[{r0+e*4}:{r0+e*4+3}], v{2 + (e>>2)}, s[12:15], 0 offen offset:{(e&3)*1024} nt")
    def load_lds(k):
        A(f"v_add_u32 v2, s39, v{LB}"); A("v_add_u32 v3, 0x1000, v2")
        for t in range(2):
            A(f"s_add_u32 m0, s61, {k*8192 + t*4096}")
            A("s_nop 0")
            for g in range(4):
                A(f"buffer_load_dwordx4 v{2+t}, s[12:15], 0 offen offset:{g*1024} nt lds")
    def woload(lo=0, hi=8):
        if NOWO: return
        for e in range(lo, hi):
            A(f"buffer_load_dwordx4 v[{WR+e*4}:{WR+e*4+3}], v{WOF}, s[24:27], s{62 + (e>>2)} offen offset:{(e&3)*1024} nt")
    def s_addr(j):
        A(f"s_and_b32 s38, s{U[j]}, 63"); A("s_lshl_b32 s38, s38, 9")
        A(f"s_lshr_b32 s39, s{U[j]}, 7"); A("s_lshl_b32 s39, s39, 15"); A("s_add_u32 s38, s38, s39")
        A(f"v_add_u32 v7, s38, v{SA}")
    def xgroup(reg, op, dst):
        A(f"v_mov_b32 v{T1}, v{reg}"); nop(2)
        A(f"v_permlane32_swap_b32 v{reg}, v{T1}"); A(f"{op} v{reg}, v{reg}, v{T1}")
        A(f"v_mov_b32 v{T1}, v{reg}"); nop(2)
        A(f"v_permlane16_swap_b32 v{reg}, v{T1}"); A(f"{op} v{dst}, v{reg}, v{T1}")
    def kproc(r0, flagbit, tag):
        for e in range(8):
            A(f"v_mfma_f32_16x16x32_bf16 v[{O+e*4}:{O+e*4+3}], v[{r0+e*4}:{r0+e*4+3}], v[{Q}:{Q+3}], 0")
        nop(1)
        for e in range(8):
            A(f"v_cndmask_b32 v{S+e}, v{O+e*4}, v{O+e*4+1}, s[94:95]"); A(f"v_cndmask_b32 v{T+e}, v{O+e*4+2}, v{O+e*4+3}, s[94:95]")
        if flagbit is not None:
            A(f"s_bitcmp1_b32 s56, {flagbit}"); A(f"s_cbranch_scc1 L_kx{tag}")
        for e in range(8): A(f"v_cndmask_b32 v{S+e}, v{S+e}, v{T+e}, s[96:97]")
        if flagbit is not None:
            A(f"s_branch L_ky{tag}")
            A(f"L_kx{tag}:")
            for e in range(8): A(f"v_cndmask_b32 v{S+e}, v{S+e}, v{T+(e^1)}, s[96:97]")
            A(f"L_ky{tag}:")
        for k in (4, 8):
            for e in range(8): A(f"v_add_f32_dpp v{S+e}, v{S+e}, v{S+e} {ROR(k)}")
        A("s_mov_b64 exec, s[18:19]")
        A(f"ds_write_b128 v7, v[{S}:{S+3}]"); A(f"ds_write_b128 v7, v[{S+4}:{S+7}] offset:16")
        A("s_mov_b64 exec, -1")
        A(f"v_max3_f32 v{M_}, v{M_}, v{S}, v{S+1}"); A(f"v_max3_f32 v{T0}, v{S+2}, v{S+3}, v{S+4}")
        A(f"v_max3_f32 v{M_}, v{M_}, v{S+5}, v{S+6}"); A(f"v_max3_f32 v{M_}, v{M_}, v{T0}, v{S+7}")
        A(f"v_mul_f32 v{T0}, s42, v{M_}"); A(f"v_sub_f32 v{T1}, v{MC}, v{T0}"); A(f"v_mov_b32 v{MC}, v{T0}"); A(f"v_exp_f32 v{T1}, v{T1}")
        for i in range(8): A(f"v_fma_f32 v{T+i}, v{S+i}, s42, -v{MC}")
        for i in range(8): A(f"v_exp_f32 v{T+i}, v{T+i}")
        A(f"v_fma_f32 v{LS}, v{LS}, v{T1}, v{T}")
        A(f"v_add_f32 v{T+1}, v{T+1}, v{T+2}"); A(f"v_add_f32 v{T+3}, v{T+3}, v{T+4}"); A(f"v_add_f32 v{T+5}, v{T+5}, v{T+6}")
        A(f"v_add_f32 v{LS}, v{LS}, v{T+7}"); A(f"v_add_f32 v{T+1}, v{T+1}, v{T+3}"); A(f"v_add_f32 v{LS}, v{LS}, v{T+5}"); A(f"v_add_f32 v{LS}, v{LS}, v{T+1}")
    seq = [("l", k) for k in range(XL)] + [("r", 0)] * XR + [("s", j) for j in range(4)]
    def issue(n):
        kind, k = seq[n]
        u = U[k] if kind == "s" else 3
        A(f"s_add_u32 s{u}, s33, {4*n}")
        tile_off(u)
        if n: A(f"s_waitcnt vmcnt({N0})")
        if kind == "l": load_lds(k)
        elif kind == "r": load(WR, False)
        else: load(RG[k], k % 2 == 0)
    A(f"v_mov_b32 v1, v{LD_}")
    if PRE == 0: A("s_barrier")
    if PRE == 2:
        A("s_cmp_lt_u32 s33, 2"); A("s_cbranch_scc1 L_pre"); A("s_barrier"); A("L_pre:")
    issue(0)
    if PRE == 2:
        A("s_cmp_ge_u32 s33, 2"); A("s_cbranch_scc1 L_pre2"); A("s_barrier"); A("L_pre2:")
    srd(24, 46, 47, 4 << 20)
    A(f"s_mov_b32 s42, {CSC:#x}")
    A(f"v_mov_b32 v{M_}, {NEG:#x}"); A(f"v_mov_b32 v{MC}, {NEGC:#x}"); A(f"v_mov_b32 v{LS}, 0")
    A(f"v_mov_b32 v{ZERO}, 0"); A(f"v_mov_b32 v{ONE}, 1"); A(f"v_mov_b32 v{TK}, 0"); A(f"v_mov_b32 v{FU}, 0")
    A(f"v_lshlrev_b32 v{VB}, 4, v0"); A(f"v_mov_b32 v{LB2}, v{VB}")
    A("v_and_b32 v10, 3, v0"); A("v_lshrrev_b32 v9, 4, v0")
    A(f"v_lshl_add_u32 v{QAD}, v10, 8, v8")
    A("v_bfe_u32 v11, v0, 3, 1"); A(f"v_lshl_add_u32 v{QAD}, v11, 6, v{QAD}"); A("v_cmp_eq_u32 s[96:97], 1, v11")
    A("v_bfe_u32 v11, v0, 2, 1"); A(f"v_lshl_add_u32 v{QAD}, v11, 4, v{QAD}"); A("v_cmp_eq_u32 s[94:95], 1, v11"); A(f"v_lshlrev_b32 v{LD2}, 10, v11")
    A(f"v_lshlrev_b32 v{SA}, 5, v10"); A(f"v_lshl_add_u32 v{SA}, v9, 7, v{SA}"); A(f"v_add_u32 v{SA}, {L_S}, v{SA}")
    A(f"v_lshlrev_b32 v{FLA}, 9, v10"); A(f"v_lshl_add_u32 v{FLA}, v9, 4, v{FLA}"); A("s_lshl_b32 s36, s33, 11"); A(f"v_add_u32 v{FLA}, s36, v{FLA}")
    A("v_and_b32 v10, 12, v0"); A("v_cmp_eq_u32 s[18:19], 0, v10")
    A(f"v_mov_b32 v{SLS}, s40"); A(f"v_mov_b32 v{SHS}, s41"); A("v_mov_b32 v10, 0x01000504"); A("v_mov_b32 v11, 0x03020706")
    A(f"v_cndmask_b32 v{SLS}, v{SLS}, v10, s[94:95]"); A(f"v_cndmask_b32 v{SHS}, v{SHS}, v11, s[94:95]")
    A(f"v_lshlrev_b32 v{WOF}, 13, v9"); A("v_and_b32 v9, 15, v0"); A(f"v_lshl_add_u32 v{WOF}, v9, 4, v{WOF}")
    A("s_lshr_b32 s58, s30, 2"); A("s_and_b32 s59, s30, 3")
    A("s_lshl_b32 s62, s29, 19"); A("s_lshl_b32 s37, s58, 17"); A("s_add_u32 s62, s62, s37")
    A("s_lshl_b32 s37, s33, 15"); A("s_add_u32 s62, s62, s37")
    A("s_lshl_b32 s37, s59, 8"); A("s_add_u32 s62, s62, s37"); A("s_add_u32 s63, s62, 4096")
    A(f"s_mul_i32 s39, s33, {HPS}"); A("s_add_u32 s32, s32, s39")
    A("s_lshl_b32 s57, s28, 3"); A("s_add_u32 s57, s57, s29"); A(f"s_mul_i32 s57, s57, {32*PSTR}"); A(f"s_mul_i32 s39, s58, {HPS}"); A("s_add_u32 s57, s57, s39"); A(f"s_add_u32 s57, s57, {WS_PO:#x}")
    A("s_mov_b32 s60, 0"); A("s_mov_b32 s50, 0"); A("s_mov_b32 s51, 0"); A("s_mov_b32 s56, 5")
    if diag: A("s_mov_b32 s43, 0")
    assert N0 <= 8
    for n in range(1, len(seq)): issue(n)
    def qwait(lbl, blk):
        A(f"{lbl}:")
        A(f"ds_read_b32 v9, v{ZERO} offset:{L_QF + 4*blk}")
        A("s_waitcnt lgkmcnt(0)")
        A("v_readfirstlane_b32 s37, v9")
        A("s_cmp_lg_u32 s37, 0"); A(f"s_cbranch_scc1 {lbl}ok")
        A("s_sleep 1")
        spin(lbl)
        A(f"{lbl}ok:")
        A(f"ds_read_b128 v[{Q}:{Q+3}], v{QAD} offset:{L_Q + blk*1024}")
    qwait("L_qa", 0)
    A(f"ds_read_b32 v{TG}, v{ZERO} offset:{L_TAG}")
    stamp(2)
    if NX:
        C("extra start-up batches (older than the ring loads, landed by now), newest first")
        A(f"s_add_u32 s38, s33, {4*(NX-1)}"); A("s_lshl_b32 s38, s38, 9"); A(f"v_add_u32 v7, s38, v{SA}")
        A(f"s_add_u32 s36, s61, {(XL-1)*8192 if XL else 0}"); A(f"v_add_u32 v5, s36, v{VB}")
        A(f"s_mov_b32 s3, {NX}")
        if XR: A("s_branch L_xproc")
        A("L_xread:")
        for e in range(8): A(f"ds_read_b128 v[{WR+e*4}:{WR+e*4+3}], v5 offset:{e*1024}")
        A("v_subrev_u32 v5, 0x2000, v5")
        A("L_xproc:")
        A("s_waitcnt lgkmcnt(0)")
        kproc(WR, None, "x")
        A("v_subrev_u32 v7, 2048, v7")
        A("s_sub_u32 s3, s3, 1"); A("s_cmp_lg_u32 s3, 0"); A("s_cbranch_scc1 L_xread")
    else:
        A("s_waitcnt lgkmcnt(0)")
    A("s_branch L_body0")
    C("phase change of the processing side: s50 -> s65")
    A("L_trans:")
    A("s_bitcmp1_b32 s50, 0"); A("s_cbranch_scc1 L_tr_v")
    xgroup(M_, "v_max_f32", M_)
    A(f"v_mul_f32 v{T0}, s42, v{M_}"); A(f"v_sub_f32 v{T0}, v{MC}, v{T0}"); A(f"v_min_f32 v{T0}, 0, v{T0}"); A(f"v_exp_f32 v{T0}, v{T0}"); nop(1)
    A(f"v_mul_f32 v{LS}, v{LS}, v{T0}")
    xgroup(LS, "v_add_f32", LS)
    A("s_lshl_b32 s36, s50, 5"); A("v_and_b32 v9, 3, v0"); A("v_lshl_add_u32 v9, v9, 2, s36")
    A("s_lshl_b32 s37, s33, 4"); A("v_add_u32 v10, s37, v9")
    A(f"ds_write_b32 v10, v{M_} offset:{L_MX}"); A(f"ds_write_b32 v10, v{LS} offset:{L_LA}")
    A("s_lshl_b32 s36, s50, 1"); A("v_mov_b32 v10, s36")
    A("s_mov_b64 exec, 1")
    A(f"ds_add_u32 v10, v{ONE} offset:{L_CNT}")
    A("s_mov_b64 exec, -1")
    for i in range(32): A(f"v_mov_b32 v{O+i}, 0")
    A("L_tr_w:")
    A(f"ds_read_b32 v11, v10 offset:{L_CNT}")
    A("s_waitcnt lgkmcnt(0)")
    A("v_readfirstlane_b32 s37, v11")
    A("s_cmp_ge_u32 s37, 4"); A("s_cbranch_scc1 L_tr_k2")
    spin("L_tr_w")
    A("L_tr_k2:")
    A(f"v_add_u32 v9, {L_MX}, v9")
    A("ds_read2_b32 v[12:13], v9 offset0:0 offset1:4"); A("ds_read2_b32 v[14:15], v9 offset0:8 offset1:12")
    A("s_waitcnt lgkmcnt(0)")
    A("v_max3_f32 v12, v12, v13, v14"); A("v_max_f32 v12, v12, v15")
    A(f"v_mul_f32 v{MC}, s42, v12")
    A("s_branch L_tr_n")
    A("L_tr_v:")
    A("s_lshr_b32 s36, s50, 1"); A("s_lshl_b32 s37, s36, 13"); A(f"v_add_u32 v9, s37, v{FLA}")
    A("s_mov_b64 exec, s[18:19]")
    for jd in range(8):
        A(f"ds_write_b128 v9, v[{O+jd*4}:{O+jd*4+3}] offset:{L_OA + jd*64}")
    A("s_mov_b64 exec, -1")
    A("s_cmp_eq_u32 s50, 3"); A("s_cbranch_scc1 L_tr_n")
    A(f"v_mov_b32 v{M_}, {NEG:#x}"); A(f"v_mov_b32 v{MC}, {NEGC:#x}"); A(f"v_mov_b32 v{LS}, 0")
    if WOH: woload(0, WOH)
    qwait("L_qb", 1)
    A("s_waitcnt lgkmcnt(0)")
    A("L_tr_n:")
    A("s_add_u32 s50, s50, 1"); A("s_cmp_lt_u32 s50, s65"); A("s_cbranch_scc1 L_trans")
    A("s_setpc_b64 s[16:17]")
    def ewcount():
        A("s_mov_b64 exec, 1")
        A(f"ds_add_rtn_u32 v{TK}, v{ZERO}, v{ONE} offset:{L_FU+4}")
        A("s_mov_b64 exec, -1")
        A("s_mov_b32 s56, 0x100") if False else None
        A("s_bitset1_b32 s56, 8")
    for j in range(4):
        A(f"L_tcall{j}:")
        A("s_call_b64 s[16:17], L_trans")
        A(f"s_branch L_tok{j}")
        A(f"L_ldph{j}:")
        A("s_mov_b64 s[12:13], s[6:7]"); A("s_mov_b64 s[6:7], s[8:9]"); A("s_mov_b64 s[8:9], s[10:11]")
        A(f"v_swap_b32 v{LB}, v{LB2}"); A(f"v_swap_b32 v{LD_}, v{LD2}")
        A("s_add_u32 s51, s51, 1"); A("s_cmp_lt_u32 s51, s36"); A(f"s_cbranch_scc1 L_ldph{j}")
        A(f"s_branch L_ldok{j}")
        A(f"L_ewk{j}:"); A("s_waitcnt vmcnt(0)"); A(f"s_branch L_kgo{j}")
        A(f"L_ewv{j}:")
        A("s_waitcnt vmcnt(16)"); A("s_cmp_eq_u32 s60, 1"); A(f"s_cbranch_scc1 L_vgo{j}")
        A("s_waitcnt vmcnt(8)"); A("s_cmp_eq_u32 s60, 2"); A(f"s_cbranch_scc1 L_vgo{j}")
        if F1 == 2: ewcount()
        A("s_waitcnt vmcnt(0)")
        if F1 == 0: ewcount()
        A(f"s_branch L_vgo{j}")
        A(f"L_endstep{j}:")
        A("s_add_u32 s60, s60, 1"); A("s_cmp_eq_u32 s60, 4"); A("s_cbranch_scc1 L_exit")
        if WOE:
            A("s_cmp_lg_u32 s60, 3"); A(f"s_cbranch_scc1 L_bodye{(j+1)%4}")
            woload()
        A(f"s_branch L_bodye{(j+1)%4}")
        A(f"L_k{j}:")
        A("s_cmp_lg_u32 s60, 0"); A(f"s_cbranch_scc1 L_ewk{j}")
        A("s_waitcnt vmcnt(24)")
        A(f"L_kgo{j}:")
        kproc(RG[j], j if j % 2 == 0 else None, j)
        A(f"s_branch L_refill{j}")
    for j in range(4):
        def ticket():
            A("s_mov_b64 exec, 1")
            A(f"ds_add_rtn_u32 v{TK}, v{ZERO}, v{ONE} offset:{L_TK}")
            A(f"ds_read_b32 v{FU}, v{ZERO} offset:{L_FU}")
            A("s_mov_b64 exec, -1")
        A(f"L_body{j}:")
        if N2 is None: ticket()
        A(f"L_bodye{j}:")
        if diag: A("s_add_u32 s43, s43, 1")
        A(f"s_lshr_b32 s65, s{U[j]}, 6"); A("s_cmp_lg_u32 s65, s50"); A(f"s_cbranch_scc1 L_tcall{j}")
        A(f"L_tok{j}:")
        s_addr(j)
        A("s_bitcmp0_b32 s50, 0"); A(f"s_cbranch_scc1 L_k{j}")
        A(f"ds_read_b128 v[{S}:{S+3}], v7"); A(f"ds_read_b128 v[{S+4}:{S+7}], v7 offset:16")
        if j % 2 == 0:
            A(f"s_bitcmp1_b32 s56, {j}"); A("s_cselect_b64 vcc, -1, 0")
            A(f"v_mov_b32 v{SELL}, s40"); A(f"v_mov_b32 v{SELH}, s41")
            A(f"v_cndmask_b32 v{SELL}, v{SELL}, v{SLS}, vcc"); A(f"v_cndmask_b32 v{SELH}, v{SELH}, v{SHS}, vcc")
            sl, sh = f"v{SELL}", f"v{SELH}"
        else:
            sl, sh = "s40", "s41"
        A("s_waitcnt lgkmcnt(0)")
        for i in range(8): A(f"v_fma_f32 v{S+i}, v{S+i}, s42, -v{MC}")
        for i in range(8): A(f"v_exp_f32 v{S+i}, v{S+i}")
        for p in range(4): A(f"v_cvt_pk_bf16_f32 v{S+p}, v{S+2*p}, v{S+2*p+1}")
        A("s_cmp_lg_u32 s60, 0"); A(f"s_cbranch_scc1 L_ewv{j}")
        A("s_waitcnt vmcnt(24)")
        A(f"L_vgo{j}:")
        src = RG[j]
        for w in range(4):
            for p in range(4):
                A(f"v_perm_b32 v{T+p}, v{src+(2*p+1)*4+w}, v{src+(2*p)*4+w}, {sl}")
            for p in range(4):
                A(f"v_perm_b32 v{T+4+p}, v{src+(2*p+1)*4+w}, v{src+(2*p)*4+w}, {sh}")
            a0 = O + (2*w) * 4; a1 = O + (2*w+1) * 4
            A(f"v_mfma_f32_16x16x32_bf16 v[{a0}:{a0+3}], v[{T}:{T+3}], v[{S}:{S+3}], v[{a0}:{a0+3}]")
            nop(1)
            A(f"v_mfma_f32_16x16x32_bf16 v[{a1}:{a1+3}], v[{T+4}:{T+7}], v[{S}:{S+3}], v[{a1}:{a1+3}]")
        A(f"L_refill{j}:")
        A("s_cmp_lg_u32 s60, 0"); A(f"s_cbranch_scc1 L_endstep{j}")
        if N2 is not None:
            if N2 < 24: A(f"s_waitcnt vmcnt({N2})")
            ticket()
        A("s_waitcnt lgkmcnt(0)")
        A(f"v_readfirstlane_b32 s{U[j]}, v{TK}"); A(f"v_readfirstlane_b32 s3, v{FU}")
        A(f"s_cmp_ge_u32 s{U[j]}, 256"); A(f"s_cbranch_scc1 L_endstep{j}")
        A(f"s_lshr_b32 s36, s{U[j]}, 6"); A("s_cmp_lg_u32 s36, s51"); A(f"s_cbranch_scc1 L_ldph{j}")
        A(f"L_ldok{j}:")
        tile_off(U[j])
        if j % 2 == 0:
            A(f"s_cmp_ge_u32 s{U[j]}, s3"); A("s_cselect_b32 s38, -1, 0")
            A(f"s_bitset0_b32 s56, {j}"); A(f"s_and_b32 s37, s38, {1 << j}"); A("s_or_b32 s56, s56, s37")
            A(f"v_and_b32 v1, s38, v{LD_}")
        load(RG[j], j % 2 == 0)
    A("s_branch L_body0")
    A("L_exit:")
    stamp(3)
    if diag: A("s_waitcnt lgkmcnt(0)")
    if F1 is not None:
        C("the last wave to finish announces the partials a little ahead of them")
        A("s_bitcmp1_b32 s56, 8"); A("s_cbranch_scc1 L_f1a")
        ewcount()
        A("L_f1a:")
        A(f"s_mul_i32 s31, s29, {8*PGS}"); A(f"s_add_u32 s31, s31, {WS_F1:#x}")
        A(f"s_mul_i32 s36, s35, {PGS}"); A("s_add_u32 s36, s36, s31"); A("s_lshl_b32 s37, s34, 2"); A("s_add_u32 s36, s36, s37")
        A("s_waitcnt lgkmcnt(0)")
        A(f"v_readfirstlane_b32 s37, v{TK}")
        A(f"s_cmp_lg_u32 s37, {F1W}"); A("s_cbranch_scc1 L_nf1")
        A("s_mov_b64 exec, 1")
        A(f"buffer_store_dword v{TG}, v{ZERO}, s[20:23], s36 offen sc1")
        A("s_mov_b64 exec, -1")
        A("L_nf1:")
    A("s_mov_b32 s65, 4")
    A("s_call_b64 s[16:17], L_trans")
    if not WOE and not WOB: woload(WOH, 8)
    C("sum of the four waves: wave = head, lane (block = l>>5, i = l&31) holds dims 4i..4i+3")
    A("v_lshrrev_b32 v8, 5, v0")
    A("v_and_b32 v4, 1, v0"); A("v_lshlrev_b32 v4, 8, v4"); A("v_bfe_u32 v5, v0, 1, 4"); A("v_lshl_add_u32 v4, v5, 2, v4")
    A("v_lshl_add_u32 v4, v8, 13, v4"); A("s_lshl_b32 s36, s33, 9"); A(f"s_add_u32 s36, s36, {L_OA}"); A("v_add_u32 v4, s36, v4")
    A("s_lshl_b32 s36, s33, 2"); A("v_lshl_add_u32 v5, v8, 4, s36")
    A(f"s_mov_b32 s36, {BSTR:#x}"); A("v_mul_lo_u32 v2, v8, s36"); A("v_and_b32 v3, 31, v0"); A("v_lshl_add_u32 v3, v3, 4, v2")
    A("s_waitcnt lgkmcnt(0)")
    A("s_barrier")
    stamp(4)
    for w in range(4):
        if w: A(f"v_add_u32 v4, 2048, v4")
        A(f"ds_read2_b32 v[{24+w*4}:{25+w*4}], v4 offset0:0 offset1:16")
        A(f"ds_read2_b32 v[{26+w*4}:{27+w*4}], v4 offset0:32 offset1:48")
    A(f"ds_read_b32 v40, v5 offset:{L_W}")
    A("s_waitcnt lgkmcnt(0)")
    for i in range(4):
        A(f"v_add_f32 v{24+i}, v{24+i}, v{28+i}"); A(f"v_add_f32 v{32+i}, v{32+i}, v{36+i}")
    for i in range(4): A(f"v_add_f32 v{48+i}, v{24+i}, v{32+i}")
    for i in range(4): A(f"v_mul_f32 v{48+i}, v{48+i}, v40")
    for i in range(4): A(f"v_min_u32 v{48+i}, -2, v{48+i}")
    A("buffer_store_dwordx4 v[48:51], v3, s[20:23], s32 offen sc1")
    stamp(5)
    LD = 64; LM = 80; WT = 96; DD = 128
    OWA, ORA, RDA, GRA = 56, 57, 58, 59
    C("first hand-off: wave w gathers dims 32w..32w+31 of its head; lane (p = l&7, u = l>>3): slot (b = u>>1, split = (u&1) + 2i)")
    A("v_lshrrev_b32 v8, 4, v0"); A(f"v_mul_u32_u24 v9, {8*PSTR}, v8")
    A("v_bfe_u32 v10, v0, 3, 1"); A(f"v_mul_u32_u24 v10, {PSTR}, v10"); A("v_add_u32 v9, v9, v10")
    A("v_and_b32 v11, 7, v0"); A("s_lshl_b32 s36, s33, 7"); A("v_lshl_add_u32 v10, v11, 4, v9"); A("v_add_u32 v10, s36, v10")
    for i in range(4): A(f"s_add_u32 s{52+i}, s57, {2*i*PSTR}")
    A("s_lshl_b32 s36, s33, 8"); A(f"s_add_u32 s36, s36, {L_OB}")
    A(f"v_lshlrev_b32 v{OWA}, 6, v8"); A(f"v_lshl_add_u32 v{OWA}, v11, 3, v{OWA}"); A(f"v_add_u32 v{OWA}, s36, v{OWA}")
    A("v_and_b32 v12, 3, v0"); A(f"v_lshlrev_b32 v{ORA}, 6, v12"); A(f"v_lshl_add_u32 v{ORA}, v8, 4, v{ORA}"); A(f"v_add_u32 v{ORA}, s36, v{ORA}")
    A(f"v_lshlrev_b32 v{RDA}, 7, v12"); A("v_lshrrev_b32 v13, 2, v0"); A(f"v_lshl_add_u32 v{RDA}, v13, 2, v{RDA}")
    A("s_lshl_b32 s36, s33, 9"); A(f"s_add_u32 s36, s36, {L_R2}"); A(f"v_add_u32 v{RDA}, s36, v{RDA}")
    A("v_lshrrev_b32 v13, 3, v0"); A(f"v_lshlrev_b32 v{GRA}, 12, v13"); A(f"v_lshl_add_u32 v{GRA}, v11, 4, v{GRA}")
    A("s_lshl_b32 s61, s28, 2"); A("s_add_u32 s61, s61, s59"); A("s_lshl_b32 s61, s61, 17"); A(f"s_add_u32 s61, s61, {WS_OP:#x}")
    A("s_lshl_b32 s63, s29, 2"); A("s_add_u32 s63, s63, s58")
    A("s_lshl_b32 s36, s33, 3"); A("s_add_u32 s36, s36, s63"); A("v_add_u32 v13, s36, v13"); A("v_and_b32 v13, 31, v13")
    A(f"v_lshl_add_u32 v{GRA}, v13, 7, v{GRA}")
    A("s_lshl_b32 s37, s33, 15"); A("s_add_u32 s62, s61, s37")
    A("s_lshl_b32 s36, s63, 12"); A("s_add_u32 s61, s61, s36"); A("s_lshl_b32 s37, s33, 10"); A("s_add_u32 s61, s61, s37")
    srd(12, 48, 49, 8192)
    A("s_lshr_b32 s3, s63, 3"); A("s_lshl_b32 s3, s3, 11"); A("s_lshl_b32 s37, s28, 10"); A("s_add_u32 s3, s3, s37")
    A("s_lshl_b32 s37, s59, 8"); A("s_add_u32 s3, s3, s37"); A("s_and_b32 s37, s63, 7"); A("s_lshl_b32 s37, s37, 5"); A("s_add_u32 s3, s3, s37")
    A("v_lshlrev_b32 v14, 3, v11"); A("s_lshl_b32 s37, s33, 6"); A("v_add_u32 v15, s37, v14")
    if F2 is not None:
        A("s_lshl_b32 s50, s28, 2"); A("s_add_u32 s50, s50, s59"); A(f"s_mul_i32 s50, s50, {8*PGS}"); A(f"s_add_u32 s50, s50, {WS_F2:#x}")
        A(f"s_mul_i32 s51, s29, {PGS}"); A("s_add_u32 s51, s51, s50"); A("s_lshl_b32 s37, s58, 2"); A("s_add_u32 s51, s51, s37")
        A("v_bfe_u32 v200, v0, 2, 3"); A(f"v_mul_u32_u24 v200, {PGS}, v200"); A("v_lshl_add_u32 v200, v12, 2, v200")
    for i in range(4): A(f"s_mov_b64 s[{94+2*i}:{95+2*i}], -1")
    A("s_waitcnt vmcnt(1)")
    transpose(WR, WT)
    C("a line read before it is written stays stale in L2 for a while: start reading once the own partials have arrived")
    if F1 is not None:
        A("L_pf1:")
        A("buffer_load_dword v201, v200, s[20:23], s31 offen sc1")
        A("s_waitcnt vmcnt(0)")
        A(f"v_cmp_ne_u32 s[36:37], v201, v{TG}")
        A("s_bcnt1_i32_b64 s36, s[36:37]")
        A(f"s_cmp_le_u32 s36, {2*F1M}"); A("s_cbranch_scc1 L_p1")
        spin("L_pf1")
    elif ACK1: A("s_waitcnt vmcnt(0)")
    A("L_p1:")
    for i in range(4):
        A(f"s_mov_b64 exec, s[{94+2*i}:{95+2*i}]")
        A(f"s_cbranch_execz L_p1s{i}")
        A(f"buffer_load_dwordx4 v[{LD+i*4}:{LD+i*4+3}], v10, s[20:23], s{52+i} offen sc1")
        A(f"L_p1s{i}:")
    A("s_mov_b64 exec, -1")
    A("s_waitcnt vmcnt(0)")
    for i in range(4): A(f"v_max3_u32 v{16+i}, v{LD+i*4}, v{LD+i*4+1}, v{LD+i*4+2}")
    for i in range(4): A(f"v_max_u32 v{16+i}, v{16+i}, v{LD+i*4+3}")
    for i in range(4): A(f"v_cmp_eq_u32 s[{94+2*i}:{95+2*i}], -1, v{16+i}")
    for k in range(4):
        A(f"v_add_f32 v{24+k}, v{LD+k}, v{LD+4+k}"); A(f"v_add_f32 v{28+k}, v{LD+8+k}, v{LD+12+k}")
    for k in range(4): A(f"v_add_f32 v{24+k}, v{24+k}, v{28+k}")
    A("s_or_b64 s[36:37], s[94:95], s[96:97]"); A("s_or_b64 s[38:39], s[98:99], s[100:101]"); A("s_or_b64 s[38:39], s[38:39], s[36:37]")
    A("s_cbranch_scc0 L_got1")
    if PS: A(f"s_sleep {PS}")
    spin("L_p1")
    A("L_got1:")
    stamp(6)
    def flag2():
        A("s_cmp_lg_u32 s33, 0"); A("s_cbranch_scc1 L_nf2")
        A("s_mov_b64 exec, 1")
        A(f"buffer_store_dword v{TG}, v{ZERO}, s[20:23], s51 offen sc1")
        A("s_mov_b64 exec, -1")
        A("L_nf2:")
    if F2 == 0: flag2()
    for i in range(4): A(f"v_add_f32_dpp v{24+i}, v{24+i}, v{24+i} {ROR8}")
    A("v_cvt_pk_bf16_f32 v32, v24, v25"); A("v_cvt_pk_bf16_f32 v33, v26, v27")
    A(f"ds_write_b64 v{OWA}, v[32:33]")
    A(f"ds_read_b128 v[36:39], v{ORA}")
    A("s_waitcnt lgkmcnt(0)")
    for jn in range(8):
        A(f"v_mfma_f32_16x16x32_bf16 v[{DD+jn*4}:{DD+jn*4+3}], v[{WT+jn*4}:{WT+jn*4+3}], v[36:39], 0")
    A("s_mov_b64 exec, s[18:19]")
    nop(1)
    for jn in range(8):
        A(f"ds_write_b128 v{FLA}, v[{DD+jn*4}:{DD+jn*4+3}] offset:{L_R2 + jn*64}")
    A("s_mov_b64 exec, -1")
    A("s_waitcnt lgkmcnt(0)")
    A("s_barrier")
    if F2 == 1: flag2()
    stamp(7)
    for w in range(4):
        if w: A(f"v_add_u32 v{RDA}, 2048, v{RDA}")
        A(f"ds_read2_b32 v[{16+w*2}:{17+w*2}], v{RDA} offset0:0 offset1:16")
    A(f"v_mov_b32 v25, v{TG}"); A(f"v_mov_b32 v27, v{TG}")
    A("s_waitcnt lgkmcnt(0)")
    A("v_add_f32 v16, v16, v18"); A("v_add_f32 v17, v17, v19"); A("v_add_f32 v20, v20, v22"); A("v_add_f32 v21, v21, v23")
    A("v_add_f32 v24, v16, v20"); A("v_add_f32 v26, v17, v21")
    C("second hand-off: tagged partial outputs; every workgroup finishes 16 output elements")
    A(f"buffer_store_dwordx4 v[24:27], v{GRA}, s[20:23], s62 offen sc1")
    stamp(10)
    A("s_mov_b64 vcc, -1")
    A("v_lshlrev_b32 v8, 2, v0")
    if F2 is not None:
        A("L_pf2:")
        A("buffer_load_dword v201, v200, s[20:23], s50 offen sc1")
        A("s_waitcnt vmcnt(0)")
        A(f"v_cmp_ne_u32 s[36:37], v201, v{TG}")
        A("s_cmp_eq_u64 s[36:37], 0"); A("s_cbranch_scc1 L_poll2")
        spin("L_pf2")
    elif ACK2: A("s_waitcnt vmcnt(0)")
    if P2INIT: A(f"s_sleep {P2INIT}")
    A("L_poll2:")
    A("s_mov_b64 exec, vcc")
    A(f"buffer_load_dwordx4 v[32:35], v{VB}, s[20:23], s61 offen sc1")
    A("s_mov_b64 exec, -1")
    A("s_waitcnt vmcnt(0)")
    A(f"v_xor_b32 v6, v33, v{TG}"); A(f"v_xor_b32 v7, v35, v{TG}"); A("v_or_b32 v6, v6, v7")
    A("v_cmp_ne_u32 vcc, 0, v6")
    A("s_cbranch_vccz L_got2")
    spin("L_poll2")
    A("L_got2:")
    A(f"v_add_f32_dpp v32, v32, v32 {ROR8}"); A(f"v_add_f32_dpp v34, v34, v34 {ROR8}")
    A("v_mov_b32 v33, v32"); A("v_mov_b32 v35, v34"); nop(1)
    A("v_permlane32_swap_b32 v32, v33"); A("v_permlane32_swap_b32 v34, v35")
    A("v_add_f32 v32, v32, v33"); A("v_add_f32 v34, v34, v35")
    A("v_mov_b32 v33, v32"); A("v_mov_b32 v35, v34"); nop(1)
    A("v_permlane16_swap_b32 v32, v33"); A("v_permlane16_swap_b32 v34, v35")
    A("v_add_f32 v32, v32, v33"); A("v_add_f32 v33, v34, v35")
    A("s_mov_b64 exec, 0xff")
    A(f"ds_write_b64 v15, v[32:33] offset:{L_Q}")
    A("s_waitcnt lgkmcnt(0)")
    A("s_barrier")
    A("s_cmp_lg_u32 s33, 0"); A("s_cbranch_scc1 L_sdone")
    A(f"ds_read2_b64 v[32:35], v14 offset0:{L_Q//8} offset1:{L_Q//8+8}")
    A(f"ds_read2_b64 v[36:39], v14 offset0:{L_Q//8+16} offset1:{L_Q//8+24}")
    A("s_waitcnt lgkmcnt(0)")
    A("v_add_f32 v32, v32, v34"); A("v_add_f32 v33, v33, v35"); A("v_add_f32 v36, v36, v38"); A("v_add_f32 v37, v37, v39")
    A("v_add_f32 v32, v32, v36"); A("v_add_f32 v33, v33, v37")
    A("v_cvt_pk_bf16_f32 v32, v32, v33")
    A("buffer_store_dword v32, v8, s[12:15], s3 offen")
    A("s_cmp_lg_u32 s2, 0"); A("s_cbranch_scc1 L_sdone")
    C("every workgroup has contributed to this result, so every workgroup has read the old tag")
    A(f"s_mov_b32 s37, {WS_EPOCH:#x}")
    A("s_mov_b64 exec, 1")
    A(f"buffer_store_dword v{TG}, v{ZERO}, s[20:23], s37 offen sc1")
    A("L_sdone:")
    if diag:
        A("s_waitcnt vmcnt(0)")
        stamp(9)
        A("s_cmp_lg_u32 s33, 0"); A("s_cbranch_scc1 L_end2")
        stamps_out(11, 0, "s43")
        A("L_end2:")
    A("s_endpgm")

    A('.section .rodata,"a"'); A(".p2align 6"); A(f".amdhsa_kernel {NAME}_kernel")
    A("  .amdhsa_next_free_vgpr 256"); A("  .amdhsa_next_free_sgpr 102"); A("  .amdhsa_accum_offset 256")
    A("  .amdhsa_group_segment_fixed_size 0"); A("  .amdhsa_kernarg_size 104"); A("  .amdhsa_user_sgpr_count 2")
    A("  .amdhsa_user_sgpr_kernarg_segment_ptr 1"); A("  .amdhsa_system_sgpr_workgroup_id_x 1"); A(".end_amdhsa_kernel")
    return "\n".join(x for x in L if x) + "\n"

HEADER = """
Two GQA decode blocks in one launch, 256 workgroups (one per CU) of 4 streaming waves + 1 helper wave.
Every workgroup owns 2048 keys of one (batch, kv head) in both blocks and streams K_A, V_A, K_B, V_B in that order:
scores go to LDS, the workgroup's true maximum is taken after each K phase, P*V is accumulated with MFMA.
q = x*wq is computed in 256 slices by the helper waves and handed over through d_ws (tagged granules).
The 8 workgroups of a pair exchange maximum and sum during the V phase, so the partials are published already weighted;
they are summed and multiplied by wo in 128x128 tiles, then reduced over heads; both hand-offs go through d_ws.
"""

def emit(V):
    for n, kw in V.items():
        open(n + ".s", "w").write(gen(False, **kw))
        open(n + "_d.s", "w").write(gen(True, **kw))
    print(" ".join(n + ".s" for n in V)); print(" ".join(n + "_d.s" for n in V))
    print(",".join(f'"work/{n}.s","work/{n}_d.s"' for n in V))

if __name__ == "__main__":
    b = dict(F2=0)
    E = lambda *t: tuple(sorted([(80,"p0"),(112,"g0"),(205,"p1"),(222,"g1")] + [(x,"b") for x in t]))
    emit({"final2": dict(b, TH=5, KAP=36)})
```

```python
import sys, math, struct
NAME = "concat_heads__gqa_block_cached__gqa_block_cached__decode"
def f2u(x): return struct.unpack("<I", struct.pack("<f", x))[0]
CSC = f2u(math.log2(math.e) / math.sqrt(128.0))

WS_Q = 0
WS_EPOCH = 0x20000
WS_PG = 0x30000; PGS = 1152
WS_DIAG = 0xC0000
WS_OP = 0x100000
WS_PO = 0x200000; PSTR = 2048 + 128; HPS = 512; BSTR = 256 * PSTR
WS_ML = 0x24000
NEG = f2u(-3.0e38); NEGC = f2u(-3.0e38 * math.log2(math.e) / math.sqrt(128.0))
WS_USED = 0x340000
L_Q = 0; L_TK = 2048; L_TAG = L_TK + 4; L_FU = L_TK + 8; L_QF = L_TK + 16; L_CNT = L_TK + 24
L_W = L_TK + 32; L_MX = L_TK + 64; L_LA = L_MX + 128; L_OB = 2560; L_RED = 3584; L_OA = 6144; HS = 544; WSZ = 4*HS; L_S = L_OA + 8*WSZ; L_XB = L_S + 65536
L_R2 = L_S
SPIN = 1 << 20
KTAG = 0x9E3779B1

def gen(diag=False, N0=2, EV=((64,"b"),(80,"p0"),(112,"g0"),(128,"b"),(192,"b"),(205,"p1"),(214,"b"),(222,"g1"),(230,"b"),(242,"b")), TH=5, KAP=36, N2=16):
    L = []
    NX = 1
    L_TOT = L_XB
    def A(s): L.append(s)
    def C(s): L.append("; " + s)
    def nop(n):
        while n > 0:
            k = min(n, 16); A(f"s_nop {k-1}"); n -= k
    def srd(d, lo, hi, nbytes):
        A(f"s_mov_b32 s{d}, s{lo}"); A(f"s_mov_b32 s{d+1}, s{hi}")
        A(f"s_mov_b32 s{d+2}, {nbytes:#x}"); A(f"s_mov_b32 s{d+3}, 0x20000")
    def stamp(i):
        if diag: A(f"s_memrealtime s[{66+2*i}:{67+2*i}]")
    def stamps_out(n, role, extra=None):
        if diag:
            A("s_waitcnt lgkmcnt(0)")
            A("s_mov_b64 exec, 1")
            A("s_lshl_b32 s37, s2, 7"); A(f"s_add_u32 s37, s37, {WS_DIAG + role*64:#x}")
            A("v_mov_b32 v1, 0")
            for i in range(n):
                A(f"v_mov_b32 v2, s{66+2*i}")
                A(f"buffer_store_dword v2, v1, s[20:23], s37 offen offset:{i*4}")
            if extra:
                A(f"v_mov_b32 v2, {extra}")
                A(f"buffer_store_dword v2, v1, s[20:23], s37 offen offset:56")
            A("s_getreg_b32 s38, hwreg(HW_REG_XCC_ID)")
            A("v_mov_b32 v2, s38")
            A(f"buffer_store_dword v2, v1, s[20:23], s37 offen offset:60")
    def spin(label):
        A("s_sub_u32 s64, s64, 1"); A("s_cmp_gt_i32 s64, 0"); A(f"s_cbranch_scc1 {label}")
    def transpose(src, dst):
        for w in range(4):
            for p in range(4):
                A(f"v_perm_b32 v{dst+(2*w)*4+p}, v{src+(2*p+1)*4+w}, v{src+(2*p)*4+w}, s40")
                A(f"v_perm_b32 v{dst+(2*w+1)*4+p}, v{src+(2*p+1)*4+w}, v{src+(2*p)*4+w}, s41")
    ROR = lambda k: f"row_ror:{k} row_mask:0xf bank_mask:0xf"
    ROR8 = ROR(8)

    A(f"; @launch grid=(256,1,1) block=(320,1,1) lds={L_TOT}")
    for line in HEADER.strip().splitlines(): C(line)
    A('.amdgcn_target "amdgcn-amd-amdhsa--gfx950"')
    A(".text")
    A(f".globl {NAME}_kernel"); A(".p2align 8"); A(f".type {NAME}_kernel,@function"); A(f"{NAME}_kernel:")
    A("s_cmp_ge_u32 s2, 256"); A("s_cbranch_scc1 L_end")
    stamp(0)
    C("s28 = block of the weight role, s29 = kv head, s30 = weight slice, s34 = batch, s35 = split, s31 = kvh*4+b, s32 = own slot")
    A("s_bfe_u32 s28, s2, 0x10001")
    A("s_mul_i32 s32, s28, 40")
    A("s_load_dwordx2 s[16:17], s[0:1], s32")
    A("s_add_u32 s32, s32, 24")
    A("s_load_dwordx4 s[44:47], s[0:1], s32")
    A("s_load_dwordx2 s[20:21], s[0:1], 96")
    A("s_load_dwordx4 s[4:7], s[0:1], 8")
    A("s_load_dwordx4 s[8:11], s[0:1], 48")
    A("s_load_dwordx2 s[48:49], s[0:1], 80")
    A("v_lshrrev_b32 v1, 6, v0")
    A("v_and_b32 v0, 63, v0")
    A("v_readfirstlane_b32 s33, v1")
    A("s_lshr_b32 s34, s2, 6")
    A("s_bfe_u32 s29, s2, 0x20004"); A("s_lshl_b32 s29, s29, 1"); A("s_bfe_u32 s36, s2, 0x10002"); A("s_add_u32 s29, s29, s36")
    A("s_bfe_u32 s37, s2, 0x10003")
    A("s_and_b32 s35, s2, 3"); A("s_lshl_b32 s35, s35, 1"); A("s_add_u32 s35, s35, s37")
    A("s_and_b32 s30, s35, 3"); A("s_lshl_b32 s36, s34, 2"); A("s_add_u32 s30, s30, s36")
    A("s_lshl_b32 s31, s29, 2"); A("s_add_u32 s31, s31, s34")
    A("s_lshl_b32 s32, s31, 3"); A("s_add_u32 s32, s32, s35"); A(f"s_mul_i32 s32, s32, {PSTR}"); A(f"s_add_u32 s32, s32, {WS_PO:#x}")
    A("s_mov_b32 s40, 0x05040100"); A("s_mov_b32 s41, 0x07060302")
    A(f"s_mov_b32 s64, {SPIN}")
    A(f"s_mov_b32 s22, {WS_USED:#x}"); A("s_mov_b32 s23, 0x20000")
    A("s_cmp_lg_u32 s33, 0"); A("s_cbranch_scc1 L_stream")

    C("=============== helper wave: q projection slice, q hand-off, load balancing ===============")
    B = [16 + 32*i for i in range(5)]
    X = 176
    A("s_setprio 3")
    A("v_bfe_u32 v1, v0, 2, 2"); A("v_lshlrev_b32 v1, 18, v1")
    A("v_lshrrev_b32 v2, 4, v0"); A("v_lshl_add_u32 v1, v2, 16, v1")
    A("v_and_b32 v2, 3, v0"); A("v_lshl_add_u32 v1, v2, 4, v1")
    A("v_lshlrev_b32 v3, 10, v2")
    A("v_bfe_u32 v2, v0, 2, 2"); A("v_lshl_add_u32 v3, v2, 6, v3")
    A("v_lshrrev_b32 v2, 4, v0"); A("v_lshl_add_u32 v3, v2, 4, v3")
    A("s_lshl_b32 s56, s29, 10"); A("s_lshl_b32 s37, s30, 6"); A("s_add_u32 s56, s56, s37")
    A("v_mov_b32 v14, 0"); A("v_mov_b32 v8, 0"); A("v_mov_b32 v9, 0"); A("v_mov_b32 v10, 0"); A("v_mov_b32 v11, 0")
    A(f"ds_write_b128 v14, v[8:11] offset:{L_QF}")
    A(f"ds_write_b32 v14, v14 offset:{L_FU}")
    for i in range(4): A(f"v_mov_b32 v{192+i}, -1")
    A("v_lshlrev_b32 v2, 4, v0"); A("v_lshlrev_b32 v13, 3, v0"); A("v_mov_b32 v8, 1")
    A(f"s_add_u32 s39, s32, {BSTR:#x}")
    A(f"s_mov_b32 s37, {WS_EPOCH:#x}")
    A("s_lshl_b32 s38, s31, 11"); A("s_mov_b32 s54, 0")
    A("s_mov_b32 s18, 4096"); A("s_mov_b32 s19, 0x20000"); A("s_mov_b32 s14, 0x400000"); A("s_mov_b32 s15, 0x20000")
    A("s_waitcnt lgkmcnt(0)")
    A("s_mov_b32 s12, s44"); A("s_mov_b32 s13, s45")
    C("hand-off tag of the previous launch: only used to tell this launch's hand-offs from older ones")
    A("buffer_load_dword v15, v14, s[20:23], s37 offen sc1")
    def taginit(n):
        A(f"s_waitcnt vmcnt({n})")
        A(f"v_add_u32 v15, {KTAG:#x}, v15")
        A(f"v_mov_b32 v10, {16 + 4*NX}"); A("v_mov_b32 v11, v15")
        A("v_readfirstlane_b32 s55, v15")
        A(f"ds_write_b64 v14, v[10:11] offset:{L_TK}")
    for rho in range(4):
        A(f"buffer_load_dwordx4 v[{X+rho*4}:{X+rho*4+3}], v3, s[16:19], 0 offen offset:{rho*256}")
    for rho in range(4):
        for e in range(8):
            off = (rho * 128 + e) * 8192
            r = B[rho+1] + e * 4
            if off: A(f"s_add_u32 s37, s56, {off:#x}")
            A(f"buffer_load_dwordx4 v[{r}:{r+3}], v1, s[12:15], s{37 if off else 56} offen nt")
    C("mark the two own partial slots as empty")
    for so in (32, 39):
        A(f"buffer_store_dwordx4 v[192:195], v2, s[20:23], s{so} offen sc1")
        A(f"buffer_store_dwordx4 v[192:195], v2, s[20:23], s{so} offen offset:1024 sc1")
    A("s_barrier")
    taginit(40)
    stamp(1)
    A("v_lshrrev_b32 v4, 4, v0"); A("v_bfe_u32 v5, v0, 2, 2")
    A("v_cmp_eq_u32 s[58:59], v4, v5")
    A("v_lshlrev_b32 v4, 9, v4"); A("v_and_b32 v5, 3, v0"); A("v_lshl_add_u32 v4, v5, 7, v4")
    A("v_lshrrev_b32 v6, 4, v0"); A("v_lshlrev_b32 v6, 7, v6")
    A("v_lshl_add_u32 v6, v5, 5, v6")
    A("v_bfe_u32 v5, v0, 2, 2"); A("v_lshl_add_u32 v6, v5, 2, v6")
    A(f"v_add_u32 v6, {L_RED}, v6"); A("v_add_u32 v7, 1024, v6")
    A("v_lshrrev_b32 v12, 4, v0"); A("v_lshlrev_b32 v12, 11, v12")
    A("v_and_b32 v5, 15, v0"); A("v_lshl_add_u32 v12, v5, 3, v12")
    A("s_lshl_b32 s36, s28, 3"); A("s_add_u32 s36, s36, s29"); A("s_lshl_b32 s36, s36, 13"); A("s_lshl_b32 s37, s30, 7"); A("s_add_u32 s36, s36, s37")
    ACC = B[4]
    for rho in range(4):
        A(f"s_waitcnt vmcnt({28 - rho*8})")
        if rho == 0: stamp(3)
        if rho == 3: stamp(4)
        transpose(B[rho+1], B[rho])
    nop(1)
    for rho in range(4):
        for jn in range(8):
            a = ACC + jn*4; t = B[rho] + jn*4
            c = "0" if rho == 0 else f"v[{a}:{a+3}]"
            A(f"v_mfma_f32_16x16x32_bf16 v[{a}:{a+3}], v[{t}:{t+3}], v[{X+rho*4}:{X+rho*4+3}], {c}")
    A("s_mov_b64 exec, s[58:59]")
    nop(1)
    for jn in range(8):
        A(f"ds_write_b128 v4, v[{ACC+jn*4}:{ACC+jn*4+3}] offset:{L_RED + jn*16}")
    A("s_mov_b64 exec, -1")
    A("ds_read2_b32 v[16:17], v6 offset0:0 offset1:4")
    A("ds_read2_b32 v[18:19], v6 offset0:128 offset1:132")
    A("ds_read2_b32 v[20:21], v7 offset0:0 offset1:4")
    A("ds_read2_b32 v[22:23], v7 offset0:128 offset1:132")
    A("s_waitcnt lgkmcnt(0)")
    A("v_add_f32 v16, v16, v18"); A("v_add_f32 v17, v17, v19"); A("v_add_f32 v20, v20, v22"); A("v_add_f32 v21, v21, v23")
    A("v_add_f32 v16, v16, v20"); A("v_add_f32 v17, v17, v21")
    A("v_cvt_pk_bf16_f32 v10, v16, v17")
    C("the slots are empty before q is published: whoever sees these granules may trust the slots")
    A("s_waitcnt vmcnt(0)")
    A(f"buffer_store_dwordx2 v[10:11], v12, s[20:23], s36 offen offset:{WS_Q} sc1")
    stamp(2)
    A("s_waitcnt vmcnt(0)")
    A("L_pollq:")
    A(f"buffer_load_dwordx4 v[16:19], v2, s[20:23], s38 offen offset:{WS_Q} sc1")
    A(f"buffer_load_dwordx4 v[20:23], v2, s[20:23], s38 offen offset:{WS_Q+1024} sc1")
    A("s_waitcnt vmcnt(0)")
    A("v_xor_b32 v17, s55, v17"); A("v_xor_b32 v19, s55, v19"); A("v_xor_b32 v21, s55, v21"); A("v_xor_b32 v23, s55, v23")
    A("v_or3_b32 v17, v17, v19, v21"); A("v_or_b32 v17, v17, v23")
    A("v_cmp_ne_u32 vcc, 0, v17")
    A("s_cbranch_vccz L_gotq")
    spin("L_pollq")
    A("L_gotq:")
    A(f"ds_write2_b32 v13, v16, v18 offset0:{L_Q//4} offset1:{L_Q//4+1}")
    A(f"ds_write2_b32 v13, v20, v22 offset0:{L_Q//4+128} offset1:{L_Q//4+129}")
    A(f"ds_write_b32 v9, v8 offset:{L_QF}")
    A("s_cmp_lg_u32 s54, 0"); A("s_cbranch_scc1 L_gotw")
    stamp(5); stamp(6)
    if diag: A(f"s_sub_u32 s43, {SPIN}, s64")
    A("s_mov_b32 s54, 1"); A("s_add_u32 s38, s38, 0x10000"); A("v_add_u32 v13, 1024, v13"); A("v_mov_b32 v9, 4")
    A("s_branch L_pollq")
    A("L_gotw:")
    if diag: A("s_mov_b32 s57, 128")
    A(f"s_mov_b32 s6, {WS_PG:#x}"); A("s_lshr_b32 s7, s2, 2"); A(f"s_mul_i32 s7, s7, {PGS}"); A("s_and_b32 s36, s2, 3"); A("s_lshl_b32 s36, s36, 2"); A("s_add_u32 s7, s7, s36")
    A("s_bfe_u32 s8, s2, 0x30003"); A(f"s_mul_i32 s8, s8, {PGS}")
    A("s_lshl_b32 s4, s31, 9"); A(f"s_add_u32 s4, s4, {WS_ML:#x}"); A("s_lshl_b32 s5, s35, 6"); A("s_add_u32 s5, s5, s4")
    A(f"s_mov_b32 s42, {CSC:#x}")
    A("v_and_b32 v3, 3, v0"); A("v_lshlrev_b32 v3, 2, v3"); A("v_and_b32 v4, 0x1f0, v2")
    assert sum(k == "b" for _, k in EV) <= 8
    for tk, kind in EV:
        A(f"s_movk_i32 s9, {tk}")
        if kind != "b": A(f"s_mov_b32 s11, {int(kind[1])}")
        if diag: A("s_waitcnt lgkmcnt(0)")
        A(f"s_call_b64 s[58:59], L_ev{kind[0]}")
    A("s_branch L_hdone")
    def waittk(tag):
        A("s_sub_u32 s10, s9, 5")
        A(f"L_prog{tag}:")
        A(f"ds_read_b32 v10, v14 offset:{L_TK}")
        A("s_waitcnt lgkmcnt(0)")
        A("v_readfirstlane_b32 s37, v10")
        if diag:
            for k, th in enumerate((64, 128, 192)):
                A(f"s_cmp_ge_u32 s37, {th}"); A(f"s_cbranch_scc1 L_pg{k}{tag}"); stamp(8 + k); A(f"L_pg{k}{tag}:")
        A("s_cmp_ge_u32 s37, s9"); A(f"s_cbranch_scc1 L_progdone{tag}")
        A("s_cmp_ge_u32 s37, s10"); A(f"s_cbranch_scc1 L_progs{tag}")
        A(f"s_sleep {8 if diag else 16}")
        A(f"L_progs{tag}:")
        A("s_sleep 1")
        spin(f"L_prog{tag}")
        A(f"L_progdone{tag}:")
    C("load balancing (speed only): at a few batch counts publish the time and compare it with 32 other workgroups;")
    C("a workgroup that is behind loads full lines only for a while, which gives it a larger share of the bandwidth")
    A("L_evb:")
    waittk("b")
    QD = [12, 16, 24, 28, 32, 44, 48, 96]
    A("s_memrealtime s[60:61]")
    A("s_add_u32 s36, s6, s7"); A("s_add_u32 s37, s6, s8")
    A("s_add_u32 s62, s20, s37"); A("s_addc_u32 s63, s21, 0")
    A("s_waitcnt lgkmcnt(0)")
    A("v_mov_b32 v20, s60")
    A("s_mov_b64 exec, 1")
    A("buffer_store_dword v20, v14, s[20:23], s36 offen sc1")
    A("s_mov_b64 exec, -1")
    for k, q in enumerate(QD): A(f"s_load_dwordx4 s[{q}:{q+3}], s[62:63], {7*k*PGS:#x} glc")
    A(f"s_add_u32 s6, s6, {64*PGS}"); A("s_mov_b32 s36, 0")
    A("s_waitcnt lgkmcnt(0)")
    A(f"ds_read_b32 v10, v14 offset:{L_TK}")
    for q in QD:
        for i in range(4):
            A(f"s_sub_u32 s37, s60, s{q+i}"); A("s_cmpk_lt_u32 s37, 1000"); A("s_cselect_b32 s37, s37, 0"); A("s_add_u32 s36, s36, s37")
    A("s_lshr_b32 s36, s36, 5"); A(f"s_sub_i32 s36, s36, {TH}"); A("s_max_i32 s36, s36, 0"); A(f"s_mul_i32 s36, s36, {KAP}"); A("s_lshr_b32 s36, s36, 8")
    if diag: A("s_add_u32 s57, s57, s36")
    A("s_waitcnt lgkmcnt(0)")
    A("v_add_u32 v10, s36, v10")
    A(f"ds_write_b32 v14, v10 offset:{L_FU}")
    A("s_setpc_b64 s[58:59]")
    C("maximum and sum of this workgroup's keys, published as two tagged granules per head")
    A("L_evp:")
    waittk("p")
    A("s_lshl_b32 s36, s11, 2"); A("v_mov_b32 v5, s36")
    A("L_evp1:")
    A(f"ds_read_b32 v10, v5 offset:{L_CNT}")
    A("s_waitcnt lgkmcnt(0)")
    A("v_readfirstlane_b32 s37, v10")
    A("s_cmp_ge_u32 s37, 4"); A("s_cbranch_scc1 L_evp2")
    A("s_sleep 2")
    spin("L_evp1")
    A("L_evp2:")
    A("s_lshl_b32 s36, s11, 6"); A(f"s_add_u32 s36, s36, {L_MX}"); A("v_add_u32 v5, s36, v3")
    A("ds_read2_b32 v[16:17], v5 offset0:0 offset1:4"); A("ds_read2_b32 v[18:19], v5 offset0:8 offset1:12")
    A("ds_read2_b32 v[20:21], v5 offset0:32 offset1:36"); A("ds_read2_b32 v[22:23], v5 offset0:40 offset1:44")
    A("s_lshl_b32 s36, s11, 14"); A("s_add_u32 s36, s36, s5")
    A("s_waitcnt lgkmcnt(0)")
    A("v_max3_f32 v24, v16, v17, v18"); A("v_max_f32 v24, v24, v19"); A("v_mul_f32 v24, s42, v24")
    for i in range(4): A(f"v_mul_f32 v{16+i}, s42, v{16+i}")
    for i in range(4): A(f"v_sub_f32 v{16+i}, v{16+i}, v24")
    for i in range(4): A(f"v_exp_f32 v{16+i}, v{16+i}")
    A("v_mov_b32 v25, v15"); A("v_mov_b32 v27, v15")
    A("v_mul_f32 v26, v16, v20")
    for i in range(1, 4): A(f"v_fmac_f32 v26, v{16+i}, v{20+i}")
    A("s_mov_b64 exec, 15")
    A("buffer_store_dwordx4 v[24:27], v2, s[20:23], s36 offen sc1")
    A("s_mov_b64 exec, -1")
    A("s_setpc_b64 s[58:59]")
    C("weight of this workgroup's partial: exp2(M - M*) / L* over the 8 workgroups of the pair")
    A("L_evg:")
    waittk("g")
    A("s_lshl_b32 s36, s11, 14"); A("s_add_u32 s36, s36, s4")
    A("L_evg1:")
    A("buffer_load_dwordx4 v[16:19], v4, s[20:23], s36 offen sc1")
    A("s_waitcnt vmcnt(0)")
    A("v_xor_b32 v17, v15, v17"); A("v_xor_b32 v19, v15, v19"); A("v_or_b32 v17, v17, v19")
    A("v_cmp_ne_u32 vcc, 0, v17")
    A("s_cbranch_vccz L_evg2")
    A("s_sleep 8")
    spin("L_evg1")
    A("L_evg2:")
    def allsp(reg, op):
        A(f"{op}_dpp v{reg}, v{reg}, v{reg} {ROR(4)}"); nop(2)
        A(f"{op}_dpp v{reg}, v{reg}, v{reg} {ROR(8)}")
        A(f"v_mov_b32 v21, v{reg}"); nop(2)
        A(f"v_permlane16_swap_b32 v{reg}, v21"); A(f"{op} v{reg}, v{reg}, v21")
    A("v_mov_b32 v20, v16"); nop(2)
    allsp(20, "v_max_f32")
    A("v_sub_f32 v16, v16, v20"); A("v_sub_f32 v17, v24, v20")
    A("v_exp_f32 v16, v16"); A("v_exp_f32 v17, v17"); nop(1)
    A("v_mul_f32 v18, v18, v16"); nop(2)
    allsp(18, "v_add_f32")
    A("v_rcp_f32 v18, v18")
    A("s_lshl_b32 s36, s11, 4"); A("v_add_u32 v5, s36, v3")
    A("v_mul_f32 v17, v17, v18")
    A(f"ds_write_b32 v5, v17 offset:{L_W}")
    A("s_setpc_b64 s[58:59]")
    A("L_hdone:")
    stamp(7)
    if diag: A("s_lshl_b32 s43, s43, 16"); A("s_add_u32 s43, s43, s57")
    stamps_out(11, 1, "s43")
    A("L_end:")
    A("s_endpgm")

    C("=============== streaming waves ===============")
    S = 8; T = 16; O = 24
    M_, MC, LS, T0, TK, FU, TG, ZERO = 56, 57, 58, 59, 60, 61, 62, 63
    RG = [64, 96, 128, 160]; Q = 192; WR = 208
    LB, LD_, LB2, LD2 = 196, 197, 198, 199
    VB, ONE, SELL, SELH, SLS, SHS, SA, QAD, WOF, FLA = 241, 242, 244, 245, 246, 247, 249, 250, 251, 254
    T1 = 6; MK = 204; PM = 32; CRA, CWA, PBA = 200, 201, 202
    U = [52, 53, 54, 55]
    A("L_stream:")
    A("s_sub_u32 s33, s33, 1")
    C("range: MiB number x + 8y of every cache buffer, 64 KiB chunks alternate with the workgroup 8 further on")
    A("s_and_b32 s36, s2, 7"); A("s_lshr_b32 s37, s2, 4"); A("s_lshl_b32 s37, s37, 3"); A("s_add_u32 s36, s36, s37"); A("s_lshl_b32 s36, s36, 20")
    A("s_bfe_u32 s37, s2, 0x10003"); A("s_lshl_b32 s37, s37, 16"); A("s_add_u32 s36, s36, s37")
    C("K: lane (s, key = (l>>2)&3, u = l&3) holds the 16-byte chunk (s>>1)*8 + (u>>1)*4 + (s&1)*2 + (u&1)")
    A("v_lshrrev_b32 v5, 5, v0"); A("v_lshlrev_b32 v8, 7, v5"); A("v_bfe_u32 v5, v0, 4, 1"); A("v_lshl_add_u32 v8, v5, 5, v8")
    A("v_bfe_u32 v5, v0, 2, 2"); A(f"v_lshl_add_u32 v{LB}, v5, 8, v8")
    A("v_bfe_u32 v5, v0, 1, 1"); A(f"v_lshl_add_u32 v{LB}, v5, 6, v{LB}"); A(f"v_lshlrev_b32 v{LD_}, 10, v5")
    A("v_and_b32 v5, 1, v0"); A(f"v_lshl_add_u32 v{LB}, v5, 4, v{LB}")
    A("s_mov_b32 s14, 0xf0000"); A("s_mov_b32 s15, 0x20000")
    A("s_waitcnt lgkmcnt(0)")
    A("s_add_u32 s12, s4, s36"); A("s_addc_u32 s13, s5, 0")
    for p in (6, 8, 10):
        A(f"s_add_u32 s{p}, s{p}, s36"); A(f"s_addc_u32 s{p+1}, s{p+1}, 0")
    def tile_off(u):
        A(f"s_bfe_u32 s39, s{u}, 0x30003"); A("s_lshl_b32 s39, s39, 17")
        A(f"s_and_b32 s38, s{u}, 7"); A("s_lshl_b32 s38, s38, 13"); A("s_add_u32 s39, s39, s38")
    def load(r0, half):
        if half:
            A(f"v_add_u32 v2, s39, v{LB}"); A("v_add_u32 v3, 1024, v2")
            A("v_add_u32 v2, v2, v1"); A("v_sub_u32 v3, v3, v1")
            A("v_add_u32 v4, 0x1000, v2"); A("v_add_u32 v5, 0x1000, v3")
            for e in range(8):
                A(f"buffer_load_dwordx4 v[{r0+e*4}:{r0+e*4+3}], v{2 + (e&1) + 2*(e>>2)}, s[12:15], 0 offen offset:{(e&2)*1024} nt")
        else:
            A(f"v_add_u32 v2, s39, v{LB}"); A("v_add_u32 v3, 0x1000, v2")
            for e in range(8):
                A(f"buffer_load_dwordx4 v[{r0+e*4}:{r0+e*4+3}], v{2 + (e>>2)}, s[12:15], 0 offen offset:{(e&3)*1024} nt")
    def woload():
        for e in range(8):
            A(f"buffer_load_dwordx4 v[{WR+e*4}:{WR+e*4+3}], v{WOF}, s[24:27], s{62 + (e>>2)} offen offset:{(e&3)*1024} nt")
    def s_addr(j):
        A(f"s_and_b32 s38, s{U[j]}, 63"); A("s_lshl_b32 s38, s38, 9")
        A(f"s_lshr_b32 s39, s{U[j]}, 7"); A("s_lshl_b32 s39, s39, 15"); A("s_add_u32 s38, s38, s39")
        A(f"v_add_u32 v7, s38, v{SA}")
    def xgroup(reg, op, dst):
        A(f"v_mov_b32 v{T1}, v{reg}"); nop(2)
        A(f"v_permlane32_swap_b32 v{reg}, v{T1}"); A(f"{op} v{reg}, v{reg}, v{T1}")
        A(f"v_mov_b32 v{T1}, v{reg}"); nop(2)
        A(f"v_permlane16_swap_b32 v{reg}, v{T1}"); A(f"{op} v{dst}, v{reg}, v{T1}")
    def kproc(r0, flagbit, tag):
        for e in range(8):
            A(f"v_mfma_f32_16x16x32_bf16 v[{O+e*4}:{O+e*4+3}], v[{r0+e*4}:{r0+e*4+3}], v[{Q}:{Q+3}], 0")
        nop(1)
        for e in range(8):
            A(f"v_cndmask_b32 v{S+e}, v{O+e*4}, v{O+e*4+1}, s[94:95]"); A(f"v_cndmask_b32 v{T+e}, v{O+e*4+2}, v{O+e*4+3}, s[94:95]")
        if flagbit is not None:
            A(f"s_bitcmp1_b32 s56, {flagbit}"); A(f"s_cbranch_scc1 L_kx{tag}")
        for e in range(8): A(f"v_cndmask_b32 v{S+e}, v{S+e}, v{T+e}, s[96:97]")
        if flagbit is not None:
            A(f"s_branch L_ky{tag}")
            A(f"L_kx{tag}:")
            for e in range(8): A(f"v_cndmask_b32 v{S+e}, v{S+e}, v{T+(e^1)}, s[96:97]")
            A(f"L_ky{tag}:")
        for k in (4, 8):
            for e in range(8): A(f"v_add_f32_dpp v{S+e}, v{S+e}, v{S+e} {ROR(k)}")
        A("s_mov_b64 exec, s[18:19]")
        A(f"ds_write_b128 v7, v[{S}:{S+3}]"); A(f"ds_write_b128 v7, v[{S+4}:{S+7}] offset:16")
        A("s_mov_b64 exec, -1")
        A(f"v_max3_f32 v{M_}, v{M_}, v{S}, v{S+1}"); A(f"v_max3_f32 v{T0}, v{S+2}, v{S+3}, v{S+4}")
        A(f"v_max3_f32 v{M_}, v{M_}, v{S+5}, v{S+6}"); A(f"v_max3_f32 v{M_}, v{M_}, v{T0}, v{S+7}")
        A(f"v_mul_f32 v{T0}, s42, v{M_}"); A(f"v_sub_f32 v{T1}, v{MC}, v{T0}"); A(f"v_mov_b32 v{MC}, v{T0}"); A(f"v_exp_f32 v{T1}, v{T1}")
        for i in range(8): A(f"v_fma_f32 v{T+i}, v{S+i}, s42, -v{MC}")
        for i in range(8): A(f"v_exp_f32 v{T+i}, v{T+i}")
        A(f"v_fma_f32 v{LS}, v{LS}, v{T1}, v{T}")
        A(f"v_add_f32 v{T+1}, v{T+1}, v{T+2}"); A(f"v_add_f32 v{T+3}, v{T+3}, v{T+4}"); A(f"v_add_f32 v{T+5}, v{T+5}, v{T+6}")
        A(f"v_add_f32 v{LS}, v{LS}, v{T+7}"); A(f"v_add_f32 v{T+1}, v{T+1}, v{T+3}"); A(f"v_add_f32 v{LS}, v{LS}, v{T+5}"); A(f"v_add_f32 v{LS}, v{LS}, v{T+1}")
    seq = [("r", 0)] + [("s", j) for j in range(4)]
    def issue(n):
        kind, k = seq[n]
        u = U[k] if kind == "s" else 3
        A(f"s_add_u32 s{u}, s33, {4*n}")
        tile_off(u)
        if n: A(f"s_waitcnt vmcnt({N0})")
        if kind == "r": load(WR, False)
        else: load(RG[k], k % 2 == 0)
    A(f"v_mov_b32 v1, v{LD_}")
    C("the helper's weight loads go first")
    A("s_barrier")
    issue(0)
    srd(24, 46, 47, 4 << 20)
    A(f"s_mov_b32 s42, {CSC:#x}")
    A(f"v_mov_b32 v{M_}, {NEG:#x}"); A(f"v_mov_b32 v{MC}, {NEGC:#x}"); A(f"v_mov_b32 v{LS}, 0")
    A(f"v_mov_b32 v{ZERO}, 0"); A(f"v_mov_b32 v{ONE}, 1"); A(f"v_mov_b32 v{TK}, 0"); A(f"v_mov_b32 v{FU}, 0")
    A(f"v_lshlrev_b32 v{VB}, 4, v0"); A(f"v_mov_b32 v{LB2}, v{VB}")
    A("v_and_b32 v10, 3, v0"); A("v_lshrrev_b32 v9, 4, v0")
    A(f"v_lshl_add_u32 v{QAD}, v10, 8, v8")
    A("v_bfe_u32 v11, v0, 3, 1"); A(f"v_lshl_add_u32 v{QAD}, v11, 6, v{QAD}"); A("v_cmp_eq_u32 s[96:97], 1, v11")
    A("v_bfe_u32 v11, v0, 2, 1"); A(f"v_lshl_add_u32 v{QAD}, v11, 4, v{QAD}"); A("v_cmp_eq_u32 s[94:95], 1, v11"); A(f"v_lshlrev_b32 v{LD2}, 10, v11")
    A(f"v_lshlrev_b32 v{SA}, 5, v10"); A(f"v_lshl_add_u32 v{SA}, v9, 7, v{SA}"); A(f"v_add_u32 v{SA}, {L_S}, v{SA}")
    A(f"v_mul_u32_u24 v{FLA}, {HS}, v10"); A(f"v_lshl_add_u32 v{FLA}, v9, 7, v{FLA}"); A("v_bfe_u32 v11, v0, 2, 2"); A(f"v_lshl_add_u32 v{FLA}, v11, 3, v{FLA}")
    A(f"s_mul_i32 s36, s33, {WSZ}"); A(f"v_add_u32 v{FLA}, s36, v{FLA}")
    for u in range(4):
        A(f"v_cmp_eq_u32 vcc, {u}, v11"); nop(2); A(f"v_cndmask_b32 v{MK+u}, 0, -1, vcc")
    A("v_and_b32 v10, 12, v0"); A("v_cmp_eq_u32 s[18:19], 0, v10")
    A(f"v_mov_b32 v{SLS}, s40"); A(f"v_mov_b32 v{SHS}, s41"); A("v_mov_b32 v10, 0x01000504"); A("v_mov_b32 v11, 0x03020706")
    A(f"v_cndmask_b32 v{SLS}, v{SLS}, v10, s[94:95]"); A(f"v_cndmask_b32 v{SHS}, v{SHS}, v11, s[94:95]")
    A(f"v_lshlrev_b32 v{WOF}, 13, v9"); A("v_and_b32 v9, 15, v0"); A(f"v_lshl_add_u32 v{WOF}, v9, 4, v{WOF}")
    C("addresses of the final sum of the four waves: wave = head, lane (block = l>>5, i = l&31) holds dims 4i..4i+3")
    A("v_lshrrev_b32 v10, 5, v0"); A("v_and_b32 v11, 31, v0")
    A(f"v_mul_u32_u24 v{CRA}, {4*WSZ}, v10"); A(f"v_lshl_add_u32 v{CRA}, v11, 4, v{CRA}"); A(f"s_mul_i32 s36, s33, {HS}"); A(f"v_add_u32 v{CRA}, s36, v{CRA}")
    A("s_lshl_b32 s36, s33, 2"); A(f"v_lshl_add_u32 v{CWA}, v10, 4, s36")
    A(f"s_mov_b32 s36, {BSTR:#x}"); A(f"v_mul_lo_u32 v{PBA}, v10, s36"); A(f"v_lshl_add_u32 v{PBA}, v11, 4, v{PBA}")
    A("s_lshr_b32 s58, s30, 2"); A("s_and_b32 s59, s30, 3")
    A("s_lshl_b32 s62, s29, 19"); A("s_lshl_b32 s37, s58, 17"); A("s_add_u32 s62, s62, s37")
    A("s_lshl_b32 s37, s33, 15"); A("s_add_u32 s62, s62, s37")
    A("s_lshl_b32 s37, s59, 8"); A("s_add_u32 s62, s62, s37"); A("s_add_u32 s63, s62, 4096")
    A(f"s_mul_i32 s39, s33, {HPS}"); A("s_add_u32 s32, s32, s39")
    A("s_lshl_b32 s57, s28, 3"); A("s_add_u32 s57, s57, s29"); A(f"s_mul_i32 s57, s57, {32*PSTR}"); A(f"s_mul_i32 s39, s58, {HPS}"); A("s_add_u32 s57, s57, s39"); A(f"s_add_u32 s57, s57, {WS_PO:#x}")
    A("s_mov_b32 s60, 0"); A("s_mov_b32 s50, 0"); A("s_mov_b32 s51, 0"); A("s_mov_b32 s56, 5")
    if diag: A("s_mov_b32 s43, 0")
    assert N0 <= 8
    for n in range(1, len(seq)): issue(n)
    def qwait(lbl, blk):
        A(f"{lbl}:")
        A(f"ds_read_b32 v9, v{ZERO} offset:{L_QF + 4*blk}")
        A("s_waitcnt lgkmcnt(0)")
        A("v_readfirstlane_b32 s37, v9")
        A("s_cmp_lg_u32 s37, 0"); A(f"s_cbranch_scc1 {lbl}ok")
        A("s_sleep 1")
        spin(lbl)
        A(f"{lbl}ok:")
        A(f"ds_read_b128 v[{Q}:{Q+3}], v{QAD} offset:{L_Q + blk*1024}")
    qwait("L_qa", 0)
    A(f"ds_read_b32 v{TG}, v{ZERO} offset:{L_TAG}")
    stamp(2)
    C("extra start-up batch (older than the ring loads, landed by now)")
    A("s_lshl_b32 s38, s33, 9"); A(f"v_add_u32 v7, s38, v{SA}")
    A("s_waitcnt lgkmcnt(0)")
    kproc(WR, None, "x")
    A("s_branch L_body0")
    C("phase change of the processing side: s50 -> s65")
    A("L_trans:")
    A("s_bitcmp1_b32 s50, 0"); A("s_cbranch_scc1 L_tr_v")
    xgroup(M_, "v_max_f32", M_)
    A(f"v_mul_f32 v{T0}, s42, v{M_}"); A(f"v_sub_f32 v{T0}, v{MC}, v{T0}"); A(f"v_min_f32 v{T0}, 0, v{T0}"); A(f"v_exp_f32 v{T0}, v{T0}"); nop(1)
    A(f"v_mul_f32 v{LS}, v{LS}, v{T0}")
    xgroup(LS, "v_add_f32", LS)
    A("s_lshl_b32 s36, s50, 5"); A("v_and_b32 v9, 3, v0"); A("v_lshl_add_u32 v9, v9, 2, s36")
    A("s_lshl_b32 s37, s33, 4"); A("v_add_u32 v10, s37, v9")
    A(f"ds_write_b32 v10, v{M_} offset:{L_MX}"); A(f"ds_write_b32 v10, v{LS} offset:{L_LA}")
    A("s_lshl_b32 s36, s50, 1"); A("v_mov_b32 v10, s36")
    A("s_mov_b64 exec, 1")
    A(f"ds_add_u32 v10, v{ONE} offset:{L_CNT}")
    A("s_mov_b64 exec, -1")
    for i in range(8): A(f"v_mov_b32 v{O+i}, 0")
    A("L_tr_w:")
    A(f"ds_read_b32 v11, v10 offset:{L_CNT}")
    A("s_waitcnt lgkmcnt(0)")
    A("v_readfirstlane_b32 s37, v11")
    A("s_cmp_ge_u32 s37, 4"); A("s_cbranch_scc1 L_tr_k2")
    spin("L_tr_w")
    A("L_tr_k2:")
    A(f"v_add_u32 v9, {L_MX}, v9")
    A("ds_read2_b32 v[12:13], v9 offset0:0 offset1:4"); A("ds_read2_b32 v[14:15], v9 offset0:8 offset1:12")
    A("s_waitcnt lgkmcnt(0)")
    A("v_max3_f32 v12, v12, v13, v14"); A("v_max_f32 v12, v12, v15")
    A(f"v_mul_f32 v{MC}, s42, v12")
    A("s_branch L_tr_n")
    A("L_tr_v:")
    A("s_lshr_b32 s36, s50, 1"); A(f"s_mul_i32 s37, s36, {4*WSZ}"); A(f"s_add_u32 s37, s37, {L_OA}"); A(f"v_add_u32 v9, s37, v{FLA}")
    for r in range(4): A(f"ds_write2_b32 v9, v{O+r}, v{O+4+r} offset0:{r*8} offset1:{r*8+1}")
    A("s_cmp_eq_u32 s50, 3"); A("s_cbranch_scc1 L_tr_n")
    A(f"v_mov_b32 v{M_}, {NEG:#x}"); A(f"v_mov_b32 v{MC}, {NEGC:#x}"); A(f"v_mov_b32 v{LS}, 0")
    qwait("L_qb", 1)
    A("s_waitcnt lgkmcnt(0)")
    A("L_tr_n:")
    A("s_add_u32 s50, s50, 1"); A("s_cmp_lt_u32 s50, s65"); A("s_cbranch_scc1 L_trans")
    A("s_setpc_b64 s[16:17]")
    for j in range(4):
        A(f"L_tcall{j}:")
        A("s_call_b64 s[16:17], L_trans")
        A(f"s_branch L_tok{j}")
        A(f"L_ldph{j}:")
        A("s_mov_b64 s[12:13], s[6:7]"); A("s_mov_b64 s[6:7], s[8:9]"); A("s_mov_b64 s[8:9], s[10:11]")
        A(f"v_swap_b32 v{LB}, v{LB2}"); A(f"v_swap_b32 v{LD_}, v{LD2}")
        A("s_add_u32 s51, s51, 1"); A("s_cmp_lt_u32 s51, s36"); A(f"s_cbranch_scc1 L_ldph{j}")
        A(f"s_branch L_ldok{j}")
        A(f"L_ewk{j}:"); A("s_waitcnt vmcnt(0)"); A(f"s_branch L_kgo{j}")
        A(f"L_ewv{j}:")
        A("s_waitcnt vmcnt(16)"); A("s_cmp_eq_u32 s60, 1"); A(f"s_cbranch_scc1 L_vgo{j}")
        A("s_waitcnt vmcnt(8)"); A("s_cmp_eq_u32 s60, 2"); A(f"s_cbranch_scc1 L_vgo{j}")
        A("s_waitcnt vmcnt(0)")
        A(f"s_branch L_vgo{j}")
        A(f"L_endstep{j}:")
        A("s_add_u32 s60, s60, 1"); A("s_cmp_eq_u32 s60, 4"); A("s_cbranch_scc1 L_exit")
        A(f"s_branch L_body{(j+1)%4}")
        A(f"L_k{j}:")
        A("s_cmp_lg_u32 s60, 0"); A(f"s_cbranch_scc1 L_ewk{j}")
        A("s_waitcnt vmcnt(24)")
        A(f"L_kgo{j}:")
        kproc(RG[j], j if j % 2 == 0 else None, j)
        A(f"s_branch L_refill{j}")
    for j in range(4):
        def ticket():
            A("s_mov_b64 exec, 1")
            A(f"ds_add_rtn_u32 v{TK}, v{ZERO}, v{ONE} offset:{L_TK}")
            A(f"ds_read_b32 v{FU}, v{ZERO} offset:{L_FU}")
            A("s_mov_b64 exec, -1")
        A(f"L_body{j}:")
        if diag: A("s_add_u32 s43, s43, 1")
        A(f"s_lshr_b32 s65, s{U[j]}, 6"); A("s_cmp_lg_u32 s65, s50"); A(f"s_cbranch_scc1 L_tcall{j}")
        A(f"L_tok{j}:")
        s_addr(j)
        A("s_bitcmp0_b32 s50, 0"); A(f"s_cbranch_scc1 L_k{j}")
        A(f"ds_read_b128 v[{S}:{S+3}], v7"); A(f"ds_read_b128 v[{S+4}:{S+7}], v7 offset:16")
        if j % 2 == 0:
            A(f"s_bitcmp1_b32 s56, {j}"); A("s_cselect_b64 vcc, -1, 0")
            A(f"v_mov_b32 v{SELL}, s40"); A(f"v_mov_b32 v{SELH}, s41")
            A(f"v_cndmask_b32 v{SELL}, v{SELL}, v{SLS}, vcc"); A(f"v_cndmask_b32 v{SELH}, v{SELH}, v{SHS}, vcc")
            sl, sh = f"v{SELL}", f"v{SELH}"
        else:
            sl, sh = "s40", "s41"
        A("s_waitcnt lgkmcnt(0)")
        for i in range(8): A(f"v_fma_f32 v{S+i}, v{S+i}, s42, -v{MC}")
        for i in range(8): A(f"v_exp_f32 v{S+i}, v{S+i}")
        for p in range(4): A(f"v_cvt_pk_bf16_f32 v{S+p}, v{S+2*p}, v{S+2*p+1}")
        for u in range(4):
            for p in range(4): A(f"v_and_b32 v{PM+u*4+p}, v{S+p}, v{MK+u}")
        A("s_cmp_lg_u32 s60, 0"); A(f"s_cbranch_scc1 L_ewv{j}")
        A("s_waitcnt vmcnt(24)")
        A(f"L_vgo{j}:")
        src = RG[j]
        for w in range(4):
            for p in range(4):
                A(f"v_perm_b32 v{T+p}, v{src+(2*p+1)*4+w}, v{src+(2*p)*4+w}, {sl}")
            for p in range(4):
                A(f"v_perm_b32 v{T+4+p}, v{src+(2*p+1)*4+w}, v{src+(2*p)*4+w}, {sh}")
            a0 = O; a1 = O + 4
            A(f"v_mfma_f32_16x16x32_bf16 v[{a0}:{a0+3}], v[{T}:{T+3}], v[{PM+w*4}:{PM+w*4+3}], v[{a0}:{a0+3}]")
            nop(1)
            A(f"v_mfma_f32_16x16x32_bf16 v[{a1}:{a1+3}], v[{T+4}:{T+7}], v[{PM+w*4}:{PM+w*4+3}], v[{a1}:{a1+3}]")
        A(f"L_refill{j}:")
        A("s_cmp_lg_u32 s60, 0"); A(f"s_cbranch_scc1 L_endstep{j}")
        if N2 < 24: A(f"s_waitcnt vmcnt({N2})")
        ticket()
        A("s_waitcnt lgkmcnt(0)")
        A(f"v_readfirstlane_b32 s{U[j]}, v{TK}"); A(f"v_readfirstlane_b32 s3, v{FU}")
        A(f"s_cmp_ge_u32 s{U[j]}, 256"); A(f"s_cbranch_scc1 L_endstep{j}")
        A(f"s_lshr_b32 s36, s{U[j]}, 6"); A("s_cmp_lg_u32 s36, s51"); A(f"s_cbranch_scc1 L_ldph{j}")
        A(f"L_ldok{j}:")
        tile_off(U[j])
        if j % 2 == 0:
            A(f"s_cmp_ge_u32 s{U[j]}, s3"); A("s_cselect_b32 s38, -1, 0")
            A(f"s_bitset0_b32 s56, {j}"); A(f"s_and_b32 s37, s38, {1 << j}"); A("s_or_b32 s56, s56, s37")
            A(f"v_and_b32 v1, s38, v{LD_}")
        load(RG[j], j % 2 == 0)
    A("s_branch L_body0")
    A("L_exit:")
    stamp(3)
    if diag: A("s_waitcnt lgkmcnt(0)")
    A("s_mov_b32 s65, 4")
    A("s_call_b64 s[16:17], L_trans")
    woload()
    A("s_waitcnt lgkmcnt(0)")
    A("s_barrier")
    stamp(4)
    for w in range(4): A(f"ds_read_b128 v[{24+w*4}:{27+w*4}], v{CRA} offset:{L_OA + w*WSZ}")
    A(f"ds_read_b32 v40, v{CWA} offset:{L_W}")
    A("s_waitcnt lgkmcnt(0)")
    for i in range(4):
        A(f"v_add_f32 v{24+i}, v{24+i}, v{28+i}"); A(f"v_add_f32 v{32+i}, v{32+i}, v{36+i}")
    for i in range(4): A(f"v_add_f32 v{48+i}, v{24+i}, v{32+i}")
    for i in range(4): A(f"v_mul_f32 v{48+i}, v{48+i}, v40")
    for i in range(4): A(f"v_min_u32 v{48+i}, -2, v{48+i}")
    A(f"buffer_store_dwordx4 v[48:51], v{PBA}, s[20:23], s32 offen sc1")
    stamp(5)
    LD = 64; LM = 80; WT = 96; DD = 128
    OWA, ORA, RDA, GRA = 56, 57, 58, 59
    C("first hand-off: wave w gathers dims 32w..32w+31 of its head; lane (p = l&7, u = l>>3): slot (b = u>>1, split = (u&1) + 2i)")
    A("v_lshrrev_b32 v8, 4, v0"); A(f"v_mul_u32_u24 v9, {8*PSTR}, v8")
    A("v_bfe_u32 v10, v0, 3, 1"); A(f"v_mul_u32_u24 v10, {PSTR}, v10"); A("v_add_u32 v9, v9, v10")
    A("v_and_b32 v11, 7, v0"); A("s_lshl_b32 s36, s33, 7"); A("v_lshl_add_u32 v10, v11, 4, v9"); A("v_add_u32 v10, s36, v10")
    for i in range(4): A(f"s_add_u32 s{52+i}, s57, {2*i*PSTR}")
    A("s_lshl_b32 s36, s33, 8"); A(f"s_add_u32 s36, s36, {L_OB}")
    A(f"v_lshlrev_b32 v{OWA}, 6, v8"); A(f"v_lshl_add_u32 v{OWA}, v11, 3, v{OWA}"); A(f"v_add_u32 v{OWA}, s36, v{OWA}")
    A("v_and_b32 v12, 3, v0"); A(f"v_lshlrev_b32 v{ORA}, 6, v12"); A(f"v_lshl_add_u32 v{ORA}, v8, 4, v{ORA}"); A(f"v_add_u32 v{ORA}, s36, v{ORA}")
    A(f"s_mul_i32 s36, s33, {HS}"); A(f"v_lshl_add_u32 v{RDA}, v0, 3, s36"); A(f"v_add_u32 v{FLA}, {L_R2}, v{FLA}")
    A("v_lshrrev_b32 v13, 3, v0"); A(f"v_lshlrev_b32 v{GRA}, 12, v13"); A(f"v_lshl_add_u32 v{GRA}, v11, 4, v{GRA}")
    A("s_lshl_b32 s61, s28, 2"); A("s_add_u32 s61, s61, s59"); A("s_lshl_b32 s61, s61, 17"); A(f"s_add_u32 s61, s61, {WS_OP:#x}")
    A("s_lshl_b32 s63, s29, 2"); A("s_add_u32 s63, s63, s58")
    A("s_lshl_b32 s36, s33, 3"); A("s_add_u32 s36, s36, s63"); A("v_add_u32 v13, s36, v13"); A("v_and_b32 v13, 31, v13")
    A(f"v_lshl_add_u32 v{GRA}, v13, 7, v{GRA}")
    A("s_lshl_b32 s37, s33, 15"); A("s_add_u32 s62, s61, s37")
    A("s_lshl_b32 s36, s63, 12"); A("s_add_u32 s61, s61, s36"); A("s_lshl_b32 s37, s33, 10"); A("s_add_u32 s61, s61, s37")
    srd(12, 48, 49, 8192)
    A("s_lshr_b32 s3, s63, 3"); A("s_lshl_b32 s3, s3, 11"); A("s_lshl_b32 s37, s28, 10"); A("s_add_u32 s3, s3, s37")
    A("s_lshl_b32 s37, s59, 8"); A("s_add_u32 s3, s3, s37"); A("s_and_b32 s37, s63, 7"); A("s_lshl_b32 s37, s37, 5"); A("s_add_u32 s3, s3, s37")
    A("v_lshlrev_b32 v14, 3, v11"); A("s_lshl_b32 s37, s33, 6"); A("v_add_u32 v15, s37, v14")
    for i in range(4): A(f"s_mov_b64 s[{94+2*i}:{95+2*i}], -1")
    A("s_waitcnt vmcnt(1)")
    transpose(WR, WT)
    C("a line read before it is written stays stale in L2 for a while: start reading once the own partials have arrived")
    A("s_waitcnt vmcnt(0)")
    A("L_p1:")
    for i in range(4):
        A(f"s_mov_b64 exec, s[{94+2*i}:{95+2*i}]")
        A(f"s_cbranch_execz L_p1s{i}")
        A(f"buffer_load_dwordx4 v[{LD+i*4}:{LD+i*4+3}], v10, s[20:23], s{52+i} offen sc1")
        A(f"L_p1s{i}:")
    A("s_mov_b64 exec, -1")
    A("s_waitcnt vmcnt(0)")
    for i in range(4): A(f"v_max3_u32 v{16+i}, v{LD+i*4}, v{LD+i*4+1}, v{LD+i*4+2}")
    for i in range(4): A(f"v_max_u32 v{16+i}, v{16+i}, v{LD+i*4+3}")
    for i in range(4): A(f"v_cmp_eq_u32 s[{94+2*i}:{95+2*i}], -1, v{16+i}")
    for k in range(4):
        A(f"v_add_f32 v{24+k}, v{LD+k}, v{LD+4+k}"); A(f"v_add_f32 v{28+k}, v{LD+8+k}, v{LD+12+k}")
    for k in range(4): A(f"v_add_f32 v{24+k}, v{24+k}, v{28+k}")
    A("s_or_b64 s[36:37], s[94:95], s[96:97]"); A("s_or_b64 s[38:39], s[98:99], s[100:101]"); A("s_or_b64 s[38:39], s[38:39], s[36:37]")
    A("s_cbranch_scc0 L_got1")
    spin("L_p1")
    A("L_got1:")
    stamp(6)
    for i in range(4): A(f"v_add_f32_dpp v{24+i}, v{24+i}, v{24+i} {ROR8}")
    A("v_cvt_pk_bf16_f32 v32, v24, v25"); A("v_cvt_pk_bf16_f32 v33, v26, v27")
    A(f"ds_write_b64 v{OWA}, v[32:33]")
    A(f"ds_read_b128 v[36:39], v{ORA}")
    A("s_waitcnt lgkmcnt(0)")
    for u in range(4):
        for p in range(4): A(f"v_and_b32 v{40+u*4+p}, v{36+p}, v{MK+u}")
        if u:
            for a_ in range(2):
                jn = 2*(u-1) + a_; c = "0" if u == 1 else f"v[{DD+a_*4}:{DD+a_*4+3}]"
                A(f"v_mfma_f32_16x16x32_bf16 v[{DD+a_*4}:{DD+a_*4+3}], v[{WT+jn*4}:{WT+jn*4+3}], v[{40+(u-1)*4}:{43+(u-1)*4}], {c}")
    for a_ in range(2):
        A(f"v_mfma_f32_16x16x32_bf16 v[{DD+a_*4}:{DD+a_*4+3}], v[{WT+(6+a_)*4}:{WT+(6+a_)*4+3}], v[52:55], v[{DD+a_*4}:{DD+a_*4+3}]")
    nop(8)
    for r in range(4): A(f"ds_write2_b32 v{FLA}, v{DD+r}, v{DD+4+r} offset0:{r*8} offset1:{r*8+1}")
    A("s_waitcnt lgkmcnt(0)")
    A("s_barrier")
    stamp(7)
    for w in range(4): A(f"ds_read_b64 v[{16+w*2}:{17+w*2}], v{RDA} offset:{L_R2 + w*WSZ}")
    A(f"v_mov_b32 v25, v{TG}"); A(f"v_mov_b32 v27, v{TG}")
    A("s_waitcnt lgkmcnt(0)")
    A("v_add_f32 v16, v16, v18"); A("v_add_f32 v17, v17, v19"); A("v_add_f32 v20, v20, v22"); A("v_add_f32 v21, v21, v23")
    A("v_add_f32 v24, v16, v20"); A("v_add_f32 v26, v17, v21")
    C("second hand-off: tagged partial outputs; every workgroup finishes 16 output elements")
    A(f"buffer_store_dwordx4 v[24:27], v{GRA}, s[20:23], s62 offen sc1")
    stamp(10)
    A("s_mov_b64 vcc, -1")
    A("v_lshlrev_b32 v8, 2, v0")
    A("s_waitcnt vmcnt(0)")
    A("L_poll2:")
    A("s_mov_b64 exec, vcc")
    A(f"buffer_load_dwordx4 v[32:35], v{VB}, s[20:23], s61 offen sc1")
    A("s_mov_b64 exec, -1")
    A("s_waitcnt vmcnt(0)")
    A(f"v_xor_b32 v6, v33, v{TG}"); A(f"v_xor_b32 v7, v35, v{TG}"); A("v_or_b32 v6, v6, v7")
    A("v_cmp_ne_u32 vcc, 0, v6")
    A("s_cbranch_vccz L_got2")
    spin("L_poll2")
    A("L_got2:")
    A(f"v_add_f32_dpp v32, v32, v32 {ROR8}"); A(f"v_add_f32_dpp v34, v34, v34 {ROR8}")
    A("v_mov_b32 v33, v32"); A("v_mov_b32 v35, v34"); nop(1)
    A("v_permlane32_swap_b32 v32, v33"); A("v_permlane32_swap_b32 v34, v35")
    A("v_add_f32 v32, v32, v33"); A("v_add_f32 v34, v34, v35")
    A("v_mov_b32 v33, v32"); A("v_mov_b32 v35, v34"); nop(1)
    A("v_permlane16_swap_b32 v32, v33"); A("v_permlane16_swap_b32 v34, v35")
    A("v_add_f32 v32, v32, v33"); A("v_add_f32 v33, v34, v35")
    A("s_mov_b64 exec, 0xff")
    A(f"ds_write_b64 v15, v[32:33] offset:{L_Q}")
    A("s_waitcnt lgkmcnt(0)")
    A("s_barrier")
    A("s_cmp_lg_u32 s33, 0"); A("s_cbranch_scc1 L_sdone")
    A(f"ds_read2_b64 v[32:35], v14 offset0:{L_Q//8} offset1:{L_Q//8+8}")
    A(f"ds_read2_b64 v[36:39], v14 offset0:{L_Q//8+16} offset1:{L_Q//8+24}")
    A("s_waitcnt lgkmcnt(0)")
    A("v_add_f32 v32, v32, v34"); A("v_add_f32 v33, v33, v35"); A("v_add_f32 v36, v36, v38"); A("v_add_f32 v37, v37, v39")
    A("v_add_f32 v32, v32, v36"); A("v_add_f32 v33, v33, v37")
    A("v_cvt_pk_bf16_f32 v32, v32, v33")
    A("buffer_store_dword v32, v8, s[12:15], s3 offen")
    A("s_cmp_lg_u32 s2, 0"); A("s_cbranch_scc1 L_sdone")
    C("every workgroup has contributed to this result, so every workgroup has read the old tag")
    A(f"s_mov_b32 s37, {WS_EPOCH:#x}")
    A("s_mov_b64 exec, 1")
    A(f"buffer_store_dword v{TG}, v{ZERO}, s[20:23], s37 offen sc1")
    A("L_sdone:")
    if diag:
        A("s_waitcnt vmcnt(0)")
        stamp(9)
        A("s_cmp_lg_u32 s33, 0"); A("s_cbranch_scc1 L_end2")
        stamps_out(11, 0, "s43")
        A("L_end2:")
    A("s_endpgm")

    A('.section .rodata,"a"'); A(".p2align 6"); A(f".amdhsa_kernel {NAME}_kernel")
    A("  .amdhsa_next_free_vgpr 256"); A("  .amdhsa_next_free_sgpr 102"); A("  .amdhsa_accum_offset 256")
    A("  .amdhsa_group_segment_fixed_size 0"); A("  .amdhsa_kernarg_size 104"); A("  .amdhsa_user_sgpr_count 2")
    A("  .amdhsa_user_sgpr_kernarg_segment_ptr 1"); A("  .amdhsa_system_sgpr_workgroup_id_x 1"); A(".end_amdhsa_kernel")
    return "\n".join(x for x in L if x) + "\n"

HEADER = """
Two GQA decode blocks in one launch, 256 workgroups (one per CU) of 4 streaming waves + 1 helper wave.
Every workgroup owns 2048 keys of one (batch, kv head) in both blocks and streams K_A, V_A, K_B, V_B in that order:
scores go to LDS, the workgroup's true maximum is taken after each K phase, P*V is accumulated with MFMA.
q = x*wq is computed in 256 slices by the helper waves and handed over through d_ws (tagged granules).
The 8 workgroups of a pair exchange maximum and sum during the V phase, so the partials are published already weighted;
they are summed and multiplied by wo in 128x128 tiles, then reduced over heads; both hand-offs go through d_ws.
"""

def emit(V):
    for n, kw in V.items():
        open(n + ".s", "w").write(gen(False, **kw))
        open(n + "_d.s", "w").write(gen(True, **kw))
    print(" ".join(n + ".s" for n in V)); print(" ".join(n + "_d.s" for n in V))
    print(",".join(f'"work/{n}.s","work/{n}_d.s"' for n in V))

if __name__ == "__main__":
    emit({"final3": {}})
```

```python
import sys, math, struct
NAME = "concat_heads__gqa_block_cached__gqa_block_cached__decode"
def f2u(x): return struct.unpack("<I", struct.pack("<f", x))[0]
CSC = f2u(math.log2(math.e) / math.sqrt(128.0))

WS_Q = 0
WS_EPOCH = 0x20000
WS_PG = 0x30000; PGS = 1152
WS_DIAG = 0xC0000
WS_OP = 0x100000
WS_PO = 0x200000; PSTR = 2048 + 128; HPS = 512; BSTR = 256 * PSTR
WS_ML = 0x24000
NEG = f2u(-3.0e38); NEGC = f2u(-3.0e38 * math.log2(math.e) / math.sqrt(128.0))
WS_XC = 0x2C000
WS_USED = 0x340000
L_Q = 0; L_TK = 2048; L_TAG = L_TK + 4; L_FU = L_TK + 8; L_QF = L_TK + 16; L_CNT = L_TK + 24
L_W = L_TK + 32; L_MX = L_TK + 64; L_LA = L_MX + 128; L_OB = 2560; L_RED = 3584; L_OA = 6144; HS = 544; WSZ = 4*HS; L_S = L_OA + 8*WSZ; L_XB = L_S + 65536
L_R2 = L_S
SPIN = 1 << 20
KTAG = 0x9E3779B1

def gen(diag=False, N0=2, EV=((64,"b"),(80,"p0"),(112,"g0"),(128,"b"),(150,"x0"),(192,"b"),(205,"p1"),(214,"b"),(222,"g1"),(230,"b"),(242,"b")), TH=5, KAP=36, N2=16, LOC=True, WARM=1):
    L = []
    NX = 1
    L_TOT = L_XB
    def A(s): L.append(s)
    def C(s): L.append("; " + s)
    def nop(n):
        while n > 0:
            k = min(n, 16); A(f"s_nop {k-1}"); n -= k
    def srd(d, lo, hi, nbytes):
        A(f"s_mov_b32 s{d}, s{lo}"); A(f"s_mov_b32 s{d+1}, s{hi}")
        A(f"s_mov_b32 s{d+2}, {nbytes:#x}"); A(f"s_mov_b32 s{d+3}, 0x20000")
    def stamp(i):
        if diag: A(f"s_memrealtime s[{66+2*i}:{67+2*i}]")
    def stamps_out(n, role, extra=None):
        if diag:
            A("s_waitcnt lgkmcnt(0)")
            A("s_mov_b64 exec, 1")
            A("s_lshl_b32 s37, s2, 7"); A(f"s_add_u32 s37, s37, {WS_DIAG + role*64:#x}")
            A("v_mov_b32 v1, 0")
            for i in range(n):
                A(f"v_mov_b32 v2, s{66+2*i}")
                A(f"buffer_store_dword v2, v1, s[20:23], s37 offen offset:{i*4}")
            if extra:
                A(f"v_mov_b32 v2, {extra}")
                A(f"buffer_store_dword v2, v1, s[20:23], s37 offen offset:56")
            A("s_getreg_b32 s38, hwreg(HW_REG_XCC_ID)")
            A("v_mov_b32 v2, s38")
            A(f"buffer_store_dword v2, v1, s[20:23], s37 offen offset:60")
    def spin(label):
        A("s_sub_u32 s64, s64, 1"); A("s_cmp_gt_i32 s64, 0"); A(f"s_cbranch_scc1 {label}")
    def transpose(src, dst):
        for w in range(4):
            for p in range(4):
                A(f"v_perm_b32 v{dst+(2*w)*4+p}, v{src+(2*p+1)*4+w}, v{src+(2*p)*4+w}, s40")
                A(f"v_perm_b32 v{dst+(2*w+1)*4+p}, v{src+(2*p+1)*4+w}, v{src+(2*p)*4+w}, s41")
    ROR = lambda k: f"row_ror:{k} row_mask:0xf bank_mask:0xf"
    ROR8 = ROR(8)

    A(f"; @launch grid=(256,1,1) block=(320,1,1) lds={L_TOT}")
    for line in HEADER.strip().splitlines(): C(line)
    A('.amdgcn_target "amdgcn-amd-amdhsa--gfx950"')
    A(".text")
    A(f".globl {NAME}_kernel"); A(".p2align 8"); A(f".type {NAME}_kernel,@function"); A(f"{NAME}_kernel:")
    A("s_cmp_ge_u32 s2, 256"); A("s_cbranch_scc1 L_end")
    stamp(0)
    C("s28 = block of the weight role, s29 = kv head, s30 = weight slice, s34 = batch, s35 = split, s31 = kvh*4+b, s32 = own slot")
    A("s_bfe_u32 s28, s2, 0x10001")
    A("s_mul_i32 s32, s28, 40")
    A("s_load_dwordx2 s[16:17], s[0:1], s32")
    A("s_add_u32 s32, s32, 24")
    A("s_load_dwordx4 s[44:47], s[0:1], s32")
    A("s_load_dwordx2 s[20:21], s[0:1], 96")
    A("s_load_dwordx4 s[4:7], s[0:1], 8")
    A("s_load_dwordx4 s[8:11], s[0:1], 48")
    A("s_load_dwordx2 s[48:49], s[0:1], 80")
    A("v_lshrrev_b32 v1, 6, v0")
    A("v_and_b32 v0, 63, v0")
    A("v_readfirstlane_b32 s33, v1")
    A("s_lshr_b32 s34, s2, 6")
    A("s_bfe_u32 s29, s2, 0x20004"); A("s_lshl_b32 s29, s29, 1"); A("s_bfe_u32 s36, s2, 0x10002"); A("s_add_u32 s29, s29, s36")
    A("s_bfe_u32 s37, s2, 0x10003")
    A("s_and_b32 s35, s2, 3"); A("s_lshl_b32 s35, s35, 1"); A("s_add_u32 s35, s35, s37")
    A("s_and_b32 s30, s35, 3"); A("s_lshl_b32 s36, s34, 2"); A("s_add_u32 s30, s30, s36")
    A("s_lshl_b32 s31, s29, 2"); A("s_add_u32 s31, s31, s34")
    A("s_lshl_b32 s32, s31, 3"); A("s_add_u32 s32, s32, s35"); A(f"s_mul_i32 s32, s32, {PSTR}"); A(f"s_add_u32 s32, s32, {WS_PO:#x}")
    A("s_mov_b32 s40, 0x05040100"); A("s_mov_b32 s41, 0x07060302")
    A(f"s_mov_b32 s64, {SPIN}")
    A(f"s_mov_b32 s22, {WS_USED:#x}"); A("s_mov_b32 s23, 0x20000")
    A("s_cmp_lg_u32 s33, 0"); A("s_cbranch_scc1 L_stream")

    C("=============== helper wave: q projection slice, q hand-off, load balancing ===============")
    B = [16 + 32*i for i in range(5)]
    X = 176
    A("s_setprio 3")
    A("v_bfe_u32 v1, v0, 2, 2"); A("v_lshlrev_b32 v1, 18, v1")
    A("v_lshrrev_b32 v2, 4, v0"); A("v_lshl_add_u32 v1, v2, 16, v1")
    A("v_and_b32 v2, 3, v0"); A("v_lshl_add_u32 v1, v2, 4, v1")
    A("v_lshlrev_b32 v3, 10, v2")
    A("v_bfe_u32 v2, v0, 2, 2"); A("v_lshl_add_u32 v3, v2, 6, v3")
    A("v_lshrrev_b32 v2, 4, v0"); A("v_lshl_add_u32 v3, v2, 4, v3")
    A("s_lshl_b32 s56, s29, 10"); A("s_lshl_b32 s37, s30, 6"); A("s_add_u32 s56, s56, s37")
    A("v_mov_b32 v14, 0"); A("v_mov_b32 v8, 0"); A("v_mov_b32 v9, 0"); A("v_mov_b32 v10, 0"); A("v_mov_b32 v11, 0")
    A(f"ds_write_b128 v14, v[8:11] offset:{L_QF}")
    A(f"ds_write_b64 v14, v[8:9] offset:{L_FU}")
    for i in range(4): A(f"v_mov_b32 v{192+i}, -1")
    A("v_lshlrev_b32 v2, 4, v0"); A("v_lshlrev_b32 v13, 3, v0"); A("v_mov_b32 v8, 1")
    A(f"s_add_u32 s39, s32, {BSTR:#x}")
    A(f"s_mov_b32 s37, {WS_EPOCH:#x}")
    A("s_lshl_b32 s38, s31, 11"); A("s_mov_b32 s54, 0")
    A("s_mov_b32 s18, 4096"); A("s_mov_b32 s19, 0x20000"); A("s_mov_b32 s14, 0x400000"); A("s_mov_b32 s15, 0x20000")
    A("s_waitcnt lgkmcnt(0)")
    A("s_mov_b32 s12, s44"); A("s_mov_b32 s13, s45")
    C("hand-off tag of the previous launch: only used to tell this launch's hand-offs from older ones")
    A("buffer_load_dword v15, v14, s[20:23], s37 offen sc1")
    def taginit(n):
        A(f"s_waitcnt vmcnt({n})")
        A(f"v_add_u32 v15, {KTAG:#x}, v15")
        A(f"v_mov_b32 v10, {16 + 4*NX}"); A("v_mov_b32 v11, v15")
        A("v_readfirstlane_b32 s55, v15")
        A(f"ds_write_b64 v14, v[10:11] offset:{L_TK}")
    for rho in range(4):
        A(f"buffer_load_dwordx4 v[{X+rho*4}:{X+rho*4+3}], v3, s[16:19], 0 offen offset:{rho*256}")
    for rho in range(4):
        for e in range(8):
            off = (rho * 128 + e) * 8192
            r = B[rho+1] + e * 4
            if off: A(f"s_add_u32 s37, s56, {off:#x}")
            A(f"buffer_load_dwordx4 v[{r}:{r+3}], v1, s[12:15], s{37 if off else 56} offen nt")
    C("mark the two own partial slots as empty")
    for so in (32, 39):
        A(f"buffer_store_dwordx4 v[192:195], v2, s[20:23], s{so} offen sc1")
        A(f"buffer_store_dwordx4 v[192:195], v2, s[20:23], s{so} offen offset:1024 sc1")
    A("s_barrier")
    taginit(40)
    stamp(1)
    A("v_lshrrev_b32 v4, 4, v0"); A("v_bfe_u32 v5, v0, 2, 2")
    A("v_cmp_eq_u32 s[58:59], v4, v5")
    A("v_lshlrev_b32 v4, 9, v4"); A("v_and_b32 v5, 3, v0"); A("v_lshl_add_u32 v4, v5, 7, v4")
    A("v_lshrrev_b32 v6, 4, v0"); A("v_lshlrev_b32 v6, 7, v6")
    A("v_lshl_add_u32 v6, v5, 5, v6")
    A("v_bfe_u32 v5, v0, 2, 2"); A("v_lshl_add_u32 v6, v5, 2, v6")
    A(f"v_add_u32 v6, {L_RED}, v6"); A("v_add_u32 v7, 1024, v6")
    A("v_lshrrev_b32 v12, 4, v0"); A("v_lshlrev_b32 v12, 11, v12")
    A("v_and_b32 v5, 15, v0"); A("v_lshl_add_u32 v12, v5, 3, v12")
    A("s_lshl_b32 s36, s28, 3"); A("s_add_u32 s36, s36, s29"); A("s_lshl_b32 s36, s36, 13"); A("s_lshl_b32 s37, s30, 7"); A("s_add_u32 s36, s36, s37")
    ACC = B[4]
    for rho in range(4):
        A(f"s_waitcnt vmcnt({28 - rho*8})")
        if rho == 0: stamp(3)
        if rho == 3: stamp(4)
        transpose(B[rho+1], B[rho])
    nop(1)
    for rho in range(4):
        for jn in range(8):
            a = ACC + jn*4; t = B[rho] + jn*4
            c = "0" if rho == 0 else f"v[{a}:{a+3}]"
            A(f"v_mfma_f32_16x16x32_bf16 v[{a}:{a+3}], v[{t}:{t+3}], v[{X+rho*4}:{X+rho*4+3}], {c}")
    A("s_mov_b64 exec, s[58:59]")
    nop(1)
    for jn in range(8):
        A(f"ds_write_b128 v4, v[{ACC+jn*4}:{ACC+jn*4+3}] offset:{L_RED + jn*16}")
    A("s_mov_b64 exec, -1")
    A("ds_read2_b32 v[16:17], v6 offset0:0 offset1:4")
    A("ds_read2_b32 v[18:19], v6 offset0:128 offset1:132")
    A("ds_read2_b32 v[20:21], v7 offset0:0 offset1:4")
    A("ds_read2_b32 v[22:23], v7 offset0:128 offset1:132")
    A("s_waitcnt lgkmcnt(0)")
    A("v_add_f32 v16, v16, v18"); A("v_add_f32 v17, v17, v19"); A("v_add_f32 v20, v20, v22"); A("v_add_f32 v21, v21, v23")
    A("v_add_f32 v16, v16, v20"); A("v_add_f32 v17, v17, v21")
    A("v_cvt_pk_bf16_f32 v10, v16, v17")
    C("the slots are empty before q is published: whoever sees these granules may trust the slots")
    A("s_waitcnt vmcnt(0)")
    A(f"buffer_store_dwordx2 v[10:11], v12, s[20:23], s36 offen offset:{WS_Q} sc1")
    stamp(2)
    A("s_waitcnt vmcnt(0)")
    A("L_pollq:")
    A(f"buffer_load_dwordx4 v[16:19], v2, s[20:23], s38 offen offset:{WS_Q} sc1")
    A(f"buffer_load_dwordx4 v[20:23], v2, s[20:23], s38 offen offset:{WS_Q+1024} sc1")
    A("s_waitcnt vmcnt(0)")
    A("v_xor_b32 v17, s55, v17"); A("v_xor_b32 v19, s55, v19"); A("v_xor_b32 v21, s55, v21"); A("v_xor_b32 v23, s55, v23")
    A("v_or3_b32 v17, v17, v19, v21"); A("v_or_b32 v17, v17, v23")
    A("v_cmp_ne_u32 vcc, 0, v17")
    A("s_cbranch_vccz L_gotq")
    spin("L_pollq")
    A("L_gotq:")
    if LOC: A("s_cmp_ge_u32 s54, 2"); A("s_cbranch_scc1 L_gotr")
    A(f"ds_write2_b32 v13, v16, v18 offset0:{L_Q//4} offset1:{L_Q//4+1}")
    A(f"ds_write2_b32 v13, v20, v22 offset0:{L_Q//4+128} offset1:{L_Q//4+129}")
    A(f"ds_write_b32 v9, v8 offset:{L_QF}")
    A("s_cmp_lg_u32 s54, 0"); A("s_cbranch_scc1 L_gotw")
    stamp(5); stamp(6)
    if diag: A(f"s_sub_u32 s43, {SPIN}, s64")
    A("s_mov_b32 s54, 1"); A("s_add_u32 s38, s38, 0x10000"); A("v_add_u32 v13, 1024, v13"); A("v_mov_b32 v9, 4")
    A("s_branch L_pollq")
    A("L_gotw:")
    if LOC:
        C("the slots read at the end belong to another kv head: see the q granules of its workgroups, which follow their resets")
        A("s_lshr_b32 s38, s2, 5"); A("s_lshl_b32 s38, s38, 13"); A("s_mov_b32 s54, 2"); A("s_branch L_pollq")
        A("L_gotr:")
        A("s_add_u32 s54, s54, 1"); A("s_add_u32 s38, s38, 0x10000"); A("s_cmp_eq_u32 s54, 3"); A("s_cbranch_scc1 L_pollq")
    if diag: A("s_mov_b32 s57, 128")
    C("compute die of this workgroup, for the 32 workgroups that exchange partial outputs at the end")
    A("s_getreg_b32 s53, hwreg(HW_REG_XCC_ID, 0, 4)")
    A("s_and_b32 s52, s2, 7"); A("s_lshl_b32 s52, s52, 10"); A(f"s_add_u32 s52, s52, {WS_XC:#x}")
    A("s_lshr_b32 s36, s2, 3"); A("s_lshl_b32 s36, s36, 5"); A("s_add_u32 s36, s36, s52")
    A("v_mov_b32 v10, s53")
    A("s_mov_b64 exec, 1")
    A("buffer_store_dwordx2 v[10:11], v14, s[20:23], s36 offen sc1")
    A("s_mov_b64 exec, -1")
    A(f"s_mov_b32 s6, {WS_PG:#x}"); A("s_lshr_b32 s7, s2, 2"); A(f"s_mul_i32 s7, s7, {PGS}"); A("s_and_b32 s36, s2, 3"); A("s_lshl_b32 s36, s36, 2"); A("s_add_u32 s7, s7, s36")
    A("s_bfe_u32 s8, s2, 0x30003"); A(f"s_mul_i32 s8, s8, {PGS}")
    A("s_lshl_b32 s4, s31, 9"); A(f"s_add_u32 s4, s4, {WS_ML:#x}"); A("s_lshl_b32 s5, s35, 6"); A("s_add_u32 s5, s5, s4")
    A(f"s_mov_b32 s42, {CSC:#x}")
    A("v_and_b32 v3, 3, v0"); A("v_lshlrev_b32 v3, 2, v3"); A("v_and_b32 v4, 0x1f0, v2")
    assert sum(k == "b" for _, k in EV) <= 8
    for tk, kind in EV:
        A(f"s_movk_i32 s9, {tk}")
        if kind != "b": A(f"s_mov_b32 s11, {int(kind[1])}")
        if diag: A("s_waitcnt lgkmcnt(0)")
        A(f"s_call_b64 s[58:59], L_ev{kind[0]}")
    A("s_branch L_hdone")
    def waittk(tag):
        A("s_sub_u32 s10, s9, 5")
        A(f"L_prog{tag}:")
        A(f"ds_read_b32 v10, v14 offset:{L_TK}")
        A("s_waitcnt lgkmcnt(0)")
        A("v_readfirstlane_b32 s37, v10")
        if diag:
            for k, th in enumerate((64, 128, 192)):
                A(f"s_cmp_ge_u32 s37, {th}"); A(f"s_cbranch_scc1 L_pg{k}{tag}"); stamp(8 + k); A(f"L_pg{k}{tag}:")
        A("s_cmp_ge_u32 s37, s9"); A(f"s_cbranch_scc1 L_progdone{tag}")
        A("s_cmp_ge_u32 s37, s10"); A(f"s_cbranch_scc1 L_progs{tag}")
        A(f"s_sleep {8 if diag else 16}")
        A(f"L_progs{tag}:")
        A("s_sleep 1")
        spin(f"L_prog{tag}")
        A(f"L_progdone{tag}:")
    C("load balancing (speed only): at a few batch counts publish the time and compare it with 32 other workgroups;")
    C("a workgroup that is behind loads full lines only for a while, which gives it a larger share of the bandwidth")
    A("L_evb:")
    waittk("b")
    QD = [12, 16, 24, 28, 32, 44, 48, 96]
    A("s_memrealtime s[60:61]")
    A("s_add_u32 s36, s6, s7"); A("s_add_u32 s37, s6, s8")
    A("s_add_u32 s62, s20, s37"); A("s_addc_u32 s63, s21, 0")
    A("s_waitcnt lgkmcnt(0)")
    A("v_mov_b32 v20, s60")
    A("s_mov_b64 exec, 1")
    A("buffer_store_dword v20, v14, s[20:23], s36 offen sc1")
    A("s_mov_b64 exec, -1")
    for k, q in enumerate(QD): A(f"s_load_dwordx4 s[{q}:{q+3}], s[62:63], {7*k*PGS:#x} glc")
    A(f"s_add_u32 s6, s6, {64*PGS}"); A("s_mov_b32 s36, 0")
    A("s_waitcnt lgkmcnt(0)")
    A(f"ds_read_b32 v10, v14 offset:{L_TK}")
    for q in QD:
        for i in range(4):
            A(f"s_sub_u32 s37, s60, s{q+i}"); A("s_cmpk_lt_u32 s37, 1000"); A("s_cselect_b32 s37, s37, 0"); A("s_add_u32 s36, s36, s37")
    A("s_lshr_b32 s36, s36, 5"); A(f"s_sub_i32 s36, s36, {TH}"); A("s_max_i32 s36, s36, 0"); A(f"s_mul_i32 s36, s36, {KAP}"); A("s_lshr_b32 s36, s36, 8")
    if diag: A("s_add_u32 s57, s57, s36")
    A("s_waitcnt lgkmcnt(0)")
    A("v_add_u32 v10, s36, v10")
    A(f"ds_write_b32 v14, v10 offset:{L_FU}")
    A("s_setpc_b64 s[58:59]")
    C("maximum and sum of this workgroup's keys, published as two tagged granules per head")
    A("L_evp:")
    waittk("p")
    A("s_lshl_b32 s36, s11, 2"); A("v_mov_b32 v5, s36")
    A("L_evp1:")
    A(f"ds_read_b32 v10, v5 offset:{L_CNT}")
    A("s_waitcnt lgkmcnt(0)")
    A("v_readfirstlane_b32 s37, v10")
    A("s_cmp_ge_u32 s37, 4"); A("s_cbranch_scc1 L_evp2")
    A("s_sleep 2")
    spin("L_evp1")
    A("L_evp2:")
    A("s_lshl_b32 s36, s11, 6"); A(f"s_add_u32 s36, s36, {L_MX}"); A("v_add_u32 v5, s36, v3")
    A("ds_read2_b32 v[16:17], v5 offset0:0 offset1:4"); A("ds_read2_b32 v[18:19], v5 offset0:8 offset1:12")
    A("ds_read2_b32 v[20:21], v5 offset0:32 offset1:36"); A("ds_read2_b32 v[22:23], v5 offset0:40 offset1:44")
    A("s_lshl_b32 s36, s11, 14"); A("s_add_u32 s36, s36, s5")
    A("s_waitcnt lgkmcnt(0)")
    A("v_max3_f32 v24, v16, v17, v18"); A("v_max_f32 v24, v24, v19"); A("v_mul_f32 v24, s42, v24")
    for i in range(4): A(f"v_mul_f32 v{16+i}, s42, v{16+i}")
    for i in range(4): A(f"v_sub_f32 v{16+i}, v{16+i}, v24")
    for i in range(4): A(f"v_exp_f32 v{16+i}, v{16+i}")
    A("v_mov_b32 v25, v15"); A("v_mov_b32 v27, v15")
    A("v_mul_f32 v26, v16, v20")
    for i in range(1, 4): A(f"v_fmac_f32 v26, v{16+i}, v{20+i}")
    A("s_mov_b64 exec, 15")
    A("buffer_store_dwordx4 v[24:27], v2, s[20:23], s36 offen sc1")
    A("s_mov_b64 exec, -1")
    A("s_setpc_b64 s[58:59]")
    C("weight of this workgroup's partial: exp2(M - M*) / L* over the 8 workgroups of the pair")
    A("L_evg:")
    waittk("g")
    A("s_lshl_b32 s36, s11, 14"); A("s_add_u32 s36, s36, s4")
    A("L_evg1:")
    A("buffer_load_dwordx4 v[16:19], v4, s[20:23], s36 offen sc1")
    A("s_waitcnt vmcnt(0)")
    A("v_xor_b32 v17, v15, v17"); A("v_xor_b32 v19, v15, v19"); A("v_or_b32 v17, v17, v19")
    A("v_cmp_ne_u32 vcc, 0, v17")
    A("s_cbranch_vccz L_evg2")
    A("s_sleep 8")
    spin("L_evg1")
    A("L_evg2:")
    def allsp(reg, op):
        A(f"{op}_dpp v{reg}, v{reg}, v{reg} {ROR(4)}"); nop(2)
        A(f"{op}_dpp v{reg}, v{reg}, v{reg} {ROR(8)}")
        A(f"v_mov_b32 v21, v{reg}"); nop(2)
        A(f"v_permlane16_swap_b32 v{reg}, v21"); A(f"{op} v{reg}, v{reg}, v21")
    A("v_mov_b32 v20, v16"); nop(2)
    allsp(20, "v_max_f32")
    A("v_sub_f32 v16, v16, v20"); A("v_sub_f32 v17, v24, v20")
    A("v_exp_f32 v16, v16"); A("v_exp_f32 v17, v17"); nop(1)
    A("v_mul_f32 v18, v18, v16"); nop(2)
    allsp(18, "v_add_f32")
    A("v_rcp_f32 v18, v18")
    A("s_lshl_b32 s36, s11, 4"); A("v_add_u32 v5, s36, v3")
    A("v_mul_f32 v17, v17, v18")
    A(f"ds_write_b32 v5, v17 offset:{L_W}")
    A("s_setpc_b64 s[58:59]")
    C("do all 32 share this workgroup's L2?  then a plain store is enough for the last hand-off")
    A("L_evx:")
    waittk("x")
    A("v_and_b32 v5, 31, v0"); A("v_lshlrev_b32 v5, 5, v5")
    A("L_evx1:")
    A("buffer_load_dwordx2 v[16:17], v5, s[20:23], s52 offen sc1")
    A("s_waitcnt vmcnt(0)")
    A("v_cmp_ne_u32 vcc, v15, v17")
    A("s_cbranch_vccz L_evx2")
    A("s_sleep 8")
    spin("L_evx1")
    A("s_setpc_b64 s[58:59]")
    A("L_evx2:")
    A("v_cmp_ne_u32 vcc, s53, v16")
    A("s_cbranch_vccnz L_evx3")
    A(f"ds_write_b32 v14, v8 offset:{L_FU+4}")
    A("L_evx3:")
    A("s_setpc_b64 s[58:59]")
    A("L_hdone:")
    stamp(7)
    if diag: A("s_lshl_b32 s43, s43, 16"); A("s_add_u32 s43, s43, s57")
    stamps_out(11, 1, "s43")
    A("L_end:")
    A("s_endpgm")

    C("=============== streaming waves ===============")
    S = 8; T = 16; O = 24
    M_, MC, LS, T0, TK, FU, TG, ZERO = 56, 57, 58, 59, 60, 61, 62, 63
    RG = [64, 96, 128, 160]; Q = 192; WR = 208
    LB, LD_, LB2, LD2 = 196, 197, 198, 199
    VB, ONE, SELL, SELH, SLS, SHS, SA, QAD, WOF, FLA = 241, 242, 244, 245, 246, 247, 249, 250, 251, 254
    T1 = 6; MK = 204; PM = 32; CRA, CWA, PBA = 200, 201, 202
    U = [52, 53, 54, 55]
    A("L_stream:")
    A("s_sub_u32 s33, s33, 1")
    C("range: MiB number x + 8y of every cache buffer, 64 KiB chunks alternate with the workgroup 8 further on")
    A("s_and_b32 s36, s2, 7"); A("s_lshr_b32 s37, s2, 4"); A("s_lshl_b32 s37, s37, 3"); A("s_add_u32 s36, s36, s37"); A("s_lshl_b32 s36, s36, 20")
    A("s_bfe_u32 s37, s2, 0x10003"); A("s_lshl_b32 s37, s37, 16"); A("s_add_u32 s36, s36, s37")
    C("K: lane (s, key = (l>>2)&3, u = l&3) holds the 16-byte chunk (s>>1)*8 + (u>>1)*4 + (s&1)*2 + (u&1)")
    A("v_lshrrev_b32 v5, 5, v0"); A("v_lshlrev_b32 v8, 7, v5"); A("v_bfe_u32 v5, v0, 4, 1"); A("v_lshl_add_u32 v8, v5, 5, v8")
    A("v_bfe_u32 v5, v0, 2, 2"); A(f"v_lshl_add_u32 v{LB}, v5, 8, v8")
    A("v_bfe_u32 v5, v0, 1, 1"); A(f"v_lshl_add_u32 v{LB}, v5, 6, v{LB}"); A(f"v_lshlrev_b32 v{LD_}, 10, v5")
    A("v_and_b32 v5, 1, v0"); A(f"v_lshl_add_u32 v{LB}, v5, 4, v{LB}")
    A("s_mov_b32 s14, 0xf0000"); A("s_mov_b32 s15, 0x20000")
    A("s_waitcnt lgkmcnt(0)")
    A("s_add_u32 s12, s4, s36"); A("s_addc_u32 s13, s5, 0")
    for p in (6, 8, 10):
        A(f"s_add_u32 s{p}, s{p}, s36"); A(f"s_addc_u32 s{p+1}, s{p+1}, 0")
    def tile_off(u):
        A(f"s_bfe_u32 s39, s{u}, 0x30003"); A("s_lshl_b32 s39, s39, 17")
        A(f"s_and_b32 s38, s{u}, 7"); A("s_lshl_b32 s38, s38, 13"); A("s_add_u32 s39, s39, s38")
    def load(r0, half):
        if half:
            A(f"v_add_u32 v2, s39, v{LB}"); A("v_add_u32 v3, 1024, v2")
            A("v_add_u32 v2, v2, v1"); A("v_sub_u32 v3, v3, v1")
            A("v_add_u32 v4, 0x1000, v2"); A("v_add_u32 v5, 0x1000, v3")
            for e in range(8):
                A(f"buffer_load_dwordx4 v[{r0+e*4}:{r0+e*4+3}], v{2 + (e&1) + 2*(e>>2)}, s[12:15], 0 offen offset:{(e&2)*1024} nt")
        else:
            A(f"v_add_u32 v2, s39, v{LB}"); A("v_add_u32 v3, 0x1000, v2")
            for e in range(8):
                A(f"buffer_load_dwordx4 v[{r0+e*4}:{r0+e*4+3}], v{2 + (e>>2)}, s[12:15], 0 offen offset:{(e&3)*1024} nt")
    def woload():
        for e in range(8):
            A(f"buffer_load_dwordx4 v[{WR+e*4}:{WR+e*4+3}], v{WOF}, s[24:27], s{62 + (e>>2)} offen offset:{(e&3)*1024} nt")
    def s_addr(j):
        A(f"s_and_b32 s38, s{U[j]}, 63"); A("s_lshl_b32 s38, s38, 9")
        A(f"s_lshr_b32 s39, s{U[j]}, 7"); A("s_lshl_b32 s39, s39, 15"); A("s_add_u32 s38, s38, s39")
        A(f"v_add_u32 v7, s38, v{SA}")
    def xgroup(reg, op, dst):
        A(f"v_mov_b32 v{T1}, v{reg}"); nop(2)
        A(f"v_permlane32_swap_b32 v{reg}, v{T1}"); A(f"{op} v{reg}, v{reg}, v{T1}")
        A(f"v_mov_b32 v{T1}, v{reg}"); nop(2)
        A(f"v_permlane16_swap_b32 v{reg}, v{T1}"); A(f"{op} v{dst}, v{reg}, v{T1}")
    def kproc(r0, flagbit, tag):
        for e in range(8):
            A(f"v_mfma_f32_16x16x32_bf16 v[{O+e*4}:{O+e*4+3}], v[{r0+e*4}:{r0+e*4+3}], v[{Q}:{Q+3}], 0")
        nop(1)
        for e in range(8):
            A(f"v_cndmask_b32 v{S+e}, v{O+e*4}, v{O+e*4+1}, s[94:95]"); A(f"v_cndmask_b32 v{T+e}, v{O+e*4+2}, v{O+e*4+3}, s[94:95]")
        if flagbit is not None:
            A(f"s_bitcmp1_b32 s56, {flagbit}"); A(f"s_cbranch_scc1 L_kx{tag}")
        for e in range(8): A(f"v_cndmask_b32 v{S+e}, v{S+e}, v{T+e}, s[96:97]")
        if flagbit is not None:
            A(f"s_branch L_ky{tag}")
            A(f"L_kx{tag}:")
            for e in range(8): A(f"v_cndmask_b32 v{S+e}, v{S+e}, v{T+(e^1)}, s[96:97]")
            A(f"L_ky{tag}:")
        for k in (4, 8):
            for e in range(8): A(f"v_add_f32_dpp v{S+e}, v{S+e}, v{S+e} {ROR(k)}")
        A("s_mov_b64 exec, s[18:19]")
        A(f"ds_write_b128 v7, v[{S}:{S+3}]"); A(f"ds_write_b128 v7, v[{S+4}:{S+7}] offset:16")
        A("s_mov_b64 exec, -1")
        A(f"v_max3_f32 v{M_}, v{M_}, v{S}, v{S+1}"); A(f"v_max3_f32 v{T0}, v{S+2}, v{S+3}, v{S+4}")
        A(f"v_max3_f32 v{M_}, v{M_}, v{S+5}, v{S+6}"); A(f"v_max3_f32 v{M_}, v{M_}, v{T0}, v{S+7}")
        A(f"v_mul_f32 v{T0}, s42, v{M_}"); A(f"v_sub_f32 v{T1}, v{MC}, v{T0}"); A(f"v_mov_b32 v{MC}, v{T0}"); A(f"v_exp_f32 v{T1}, v{T1}")
        for i in range(8): A(f"v_fma_f32 v{T+i}, v{S+i}, s42, -v{MC}")
        for i in range(8): A(f"v_exp_f32 v{T+i}, v{T+i}")
        A(f"v_fma_f32 v{LS}, v{LS}, v{T1}, v{T}")
        A(f"v_add_f32 v{T+1}, v{T+1}, v{T+2}"); A(f"v_add_f32 v{T+3}, v{T+3}, v{T+4}"); A(f"v_add_f32 v{T+5}, v{T+5}, v{T+6}")
        A(f"v_add_f32 v{LS}, v{LS}, v{T+7}"); A(f"v_add_f32 v{T+1}, v{T+1}, v{T+3}"); A(f"v_add_f32 v{LS}, v{LS}, v{T+5}"); A(f"v_add_f32 v{LS}, v{LS}, v{T+1}")
    seq = [("r", 0)] + [("s", j) for j in range(4)]
    def issue(n):
        kind, k = seq[n]
        u = U[k] if kind == "s" else 3
        A(f"s_add_u32 s{u}, s33, {4*n}")
        tile_off(u)
        if n: A(f"s_waitcnt vmcnt({N0})")
        if kind == "r": load(WR, False)
        else: load(RG[k], k % 2 == 0)
    A(f"v_mov_b32 v1, v{LD_}")
    C("the helper's weight loads go first")
    A("s_barrier")
    issue(0)
    srd(24, 46, 47, 4 << 20)
    A(f"s_mov_b32 s42, {CSC:#x}")
    A(f"v_mov_b32 v{M_}, {NEG:#x}"); A(f"v_mov_b32 v{MC}, {NEGC:#x}"); A(f"v_mov_b32 v{LS}, 0")
    A(f"v_mov_b32 v{ZERO}, 0"); A(f"v_mov_b32 v{ONE}, 1"); A(f"v_mov_b32 v{TK}, 0"); A(f"v_mov_b32 v{FU}, 0")
    A(f"v_lshlrev_b32 v{VB}, 4, v0"); A(f"v_mov_b32 v{LB2}, v{VB}")
    A("v_and_b32 v10, 3, v0"); A("v_lshrrev_b32 v9, 4, v0")
    A(f"v_lshl_add_u32 v{QAD}, v10, 8, v8")
    A("v_bfe_u32 v11, v0, 3, 1"); A(f"v_lshl_add_u32 v{QAD}, v11, 6, v{QAD}"); A("v_cmp_eq_u32 s[96:97], 1, v11")
    A("v_bfe_u32 v11, v0, 2, 1"); A(f"v_lshl_add_u32 v{QAD}, v11, 4, v{QAD}"); A("v_cmp_eq_u32 s[94:95], 1, v11"); A(f"v_lshlrev_b32 v{LD2}, 10, v11")
    A(f"v_lshlrev_b32 v{SA}, 5, v10"); A(f"v_lshl_add_u32 v{SA}, v9, 7, v{SA}"); A(f"v_add_u32 v{SA}, {L_S}, v{SA}")
    A(f"v_mul_u32_u24 v{FLA}, {HS}, v10"); A(f"v_lshl_add_u32 v{FLA}, v9, 7, v{FLA}"); A("v_bfe_u32 v11, v0, 2, 2"); A(f"v_lshl_add_u32 v{FLA}, v11, 3, v{FLA}")
    A(f"s_mul_i32 s36, s33, {WSZ}"); A(f"v_add_u32 v{FLA}, s36, v{FLA}")
    for u in range(4):
        A(f"v_cmp_eq_u32 vcc, {u}, v11"); nop(2); A(f"v_cndmask_b32 v{MK+u}, 0, -1, vcc")
    A("v_and_b32 v10, 12, v0"); A("v_cmp_eq_u32 s[18:19], 0, v10")
    A(f"v_mov_b32 v{SLS}, s40"); A(f"v_mov_b32 v{SHS}, s41"); A("v_mov_b32 v10, 0x01000504"); A("v_mov_b32 v11, 0x03020706")
    A(f"v_cndmask_b32 v{SLS}, v{SLS}, v10, s[94:95]"); A(f"v_cndmask_b32 v{SHS}, v{SHS}, v11, s[94:95]")
    A(f"v_lshlrev_b32 v{WOF}, 13, v9"); A("v_and_b32 v9, 15, v0"); A(f"v_lshl_add_u32 v{WOF}, v9, 4, v{WOF}")
    C("addresses of the final sum of the four waves: wave = head, lane (block = l>>5, i = l&31) holds dims 4i..4i+3")
    A("v_lshrrev_b32 v10, 5, v0"); A("v_and_b32 v11, 31, v0")
    A(f"v_mul_u32_u24 v{CRA}, {4*WSZ}, v10"); A(f"v_lshl_add_u32 v{CRA}, v11, 4, v{CRA}"); A(f"s_mul_i32 s36, s33, {HS}"); A(f"v_add_u32 v{CRA}, s36, v{CRA}")
    A("s_lshl_b32 s36, s33, 2"); A(f"v_lshl_add_u32 v{CWA}, v10, 4, s36")
    A(f"s_mov_b32 s36, {BSTR:#x}"); A(f"v_mul_lo_u32 v{PBA}, v10, s36"); A(f"v_lshl_add_u32 v{PBA}, v11, 4, v{PBA}")
    if LOC:
        A("s_lshr_b32 s29, s2, 5"); A("s_bfe_u32 s58, s2, 0x20003"); A("s_bfe_u32 s59, s2, 0x10002"); A("s_lshl_b32 s59, s59, 1"); A("s_and_b32 s37, s2, 1"); A("s_add_u32 s59, s59, s37")
    else:
        A("s_lshr_b32 s58, s30, 2"); A("s_and_b32 s59, s30, 3")
    A("s_lshl_b32 s62, s29, 19"); A("s_lshl_b32 s37, s58, 17"); A("s_add_u32 s62, s62, s37")
    A("s_lshl_b32 s37, s33, 15"); A("s_add_u32 s62, s62, s37")
    A("s_lshl_b32 s37, s59, 8"); A("s_add_u32 s62, s62, s37"); A("s_add_u32 s63, s62, 4096")
    A(f"s_mul_i32 s39, s33, {HPS}"); A("s_add_u32 s32, s32, s39")
    A("s_lshl_b32 s57, s28, 3"); A("s_add_u32 s57, s57, s29"); A(f"s_mul_i32 s57, s57, {32*PSTR}"); A(f"s_mul_i32 s39, s58, {HPS}"); A("s_add_u32 s57, s57, s39"); A(f"s_add_u32 s57, s57, {WS_PO:#x}")
    A("s_mov_b32 s60, 0"); A("s_mov_b32 s50, 0"); A("s_mov_b32 s51, 0"); A("s_mov_b32 s56, 5")
    if diag: A("s_mov_b32 s43, 0")
    assert N0 <= 8
    for n in range(1, len(seq)): issue(n)
    def qwait(lbl, blk):
        A(f"{lbl}:")
        A(f"ds_read_b32 v9, v{ZERO} offset:{L_QF + 4*blk}")
        A("s_waitcnt lgkmcnt(0)")
        A("v_readfirstlane_b32 s37, v9")
        A("s_cmp_lg_u32 s37, 0"); A(f"s_cbranch_scc1 {lbl}ok")
        A("s_sleep 1")
        spin(lbl)
        A(f"{lbl}ok:")
        A(f"ds_read_b128 v[{Q}:{Q+3}], v{QAD} offset:{L_Q + blk*1024}")
    qwait("L_qa", 0)
    A(f"ds_read_b32 v{TG}, v{ZERO} offset:{L_TAG}")
    stamp(2)
    C("extra start-up batch (older than the ring loads, landed by now)")
    A("s_lshl_b32 s38, s33, 9"); A(f"v_add_u32 v7, s38, v{SA}")
    A("s_waitcnt lgkmcnt(0)")
    kproc(WR, None, "x")
    A("s_branch L_body0")
    C("phase change of the processing side: s50 -> s65")
    A("L_trans:")
    A("s_bitcmp1_b32 s50, 0"); A("s_cbranch_scc1 L_tr_v")
    xgroup(M_, "v_max_f32", M_)
    A(f"v_mul_f32 v{T0}, s42, v{M_}"); A(f"v_sub_f32 v{T0}, v{MC}, v{T0}"); A(f"v_min_f32 v{T0}, 0, v{T0}"); A(f"v_exp_f32 v{T0}, v{T0}"); nop(1)
    A(f"v_mul_f32 v{LS}, v{LS}, v{T0}")
    xgroup(LS, "v_add_f32", LS)
    A("s_lshl_b32 s36, s50, 5"); A("v_and_b32 v9, 3, v0"); A("v_lshl_add_u32 v9, v9, 2, s36")
    A("s_lshl_b32 s37, s33, 4"); A("v_add_u32 v10, s37, v9")
    A(f"ds_write_b32 v10, v{M_} offset:{L_MX}"); A(f"ds_write_b32 v10, v{LS} offset:{L_LA}")
    A("s_lshl_b32 s36, s50, 1"); A("v_mov_b32 v10, s36")
    A("s_mov_b64 exec, 1")
    A(f"ds_add_u32 v10, v{ONE} offset:{L_CNT}")
    A("s_mov_b64 exec, -1")
    for i in range(8): A(f"v_mov_b32 v{O+i}, 0")
    A("L_tr_w:")
    A(f"ds_read_b32 v11, v10 offset:{L_CNT}")
    A("s_waitcnt lgkmcnt(0)")
    A("v_readfirstlane_b32 s37, v11")
    A("s_cmp_ge_u32 s37, 4"); A("s_cbranch_scc1 L_tr_k2")
    spin("L_tr_w")
    A("L_tr_k2:")
    A(f"v_add_u32 v9, {L_MX}, v9")
    A("ds_read2_b32 v[12:13], v9 offset0:0 offset1:4"); A("ds_read2_b32 v[14:15], v9 offset0:8 offset1:12")
    A("s_waitcnt lgkmcnt(0)")
    A("v_max3_f32 v12, v12, v13, v14"); A("v_max_f32 v12, v12, v15")
    A(f"v_mul_f32 v{MC}, s42, v12")
    A("s_branch L_tr_n")
    A("L_tr_v:")
    A("s_lshr_b32 s36, s50, 1"); A(f"s_mul_i32 s37, s36, {4*WSZ}"); A(f"s_add_u32 s37, s37, {L_OA}"); A(f"v_add_u32 v9, s37, v{FLA}")
    for r in range(4): A(f"ds_write2_b32 v9, v{O+r}, v{O+4+r} offset0:{r*8} offset1:{r*8+1}")
    A("s_cmp_eq_u32 s50, 3"); A("s_cbranch_scc1 L_tr_n")
    A(f"v_mov_b32 v{M_}, {NEG:#x}"); A(f"v_mov_b32 v{MC}, {NEGC:#x}"); A(f"v_mov_b32 v{LS}, 0")
    qwait("L_qb", 1)
    A("s_waitcnt lgkmcnt(0)")
    A("L_tr_n:")
    A("s_add_u32 s50, s50, 1"); A("s_cmp_lt_u32 s50, s65"); A("s_cbranch_scc1 L_trans")
    A("s_setpc_b64 s[16:17]")
    for j in range(4):
        A(f"L_tcall{j}:")
        A("s_call_b64 s[16:17], L_trans")
        A(f"s_branch L_tok{j}")
        A(f"L_ldph{j}:")
        A("s_mov_b64 s[12:13], s[6:7]"); A("s_mov_b64 s[6:7], s[8:9]"); A("s_mov_b64 s[8:9], s[10:11]")
        A(f"v_swap_b32 v{LB}, v{LB2}"); A(f"v_swap_b32 v{LD_}, v{LD2}")
        A("s_add_u32 s51, s51, 1"); A("s_cmp_lt_u32 s51, s36"); A(f"s_cbranch_scc1 L_ldph{j}")
        A(f"s_branch L_ldok{j}")
        A(f"L_ewk{j}:"); A("s_waitcnt vmcnt(0)"); A(f"s_branch L_kgo{j}")
        A(f"L_ewv{j}:")
        A("s_waitcnt vmcnt(16)"); A("s_cmp_eq_u32 s60, 1"); A(f"s_cbranch_scc1 L_vgo{j}")
        A("s_waitcnt vmcnt(8)"); A("s_cmp_eq_u32 s60, 2"); A(f"s_cbranch_scc1 L_vgo{j}")
        A("s_waitcnt vmcnt(0)")
        A(f"s_branch L_vgo{j}")
        A(f"L_endstep{j}:")
        A("s_add_u32 s60, s60, 1"); A("s_cmp_eq_u32 s60, 4"); A("s_cbranch_scc1 L_exit")
        A(f"s_branch L_body{(j+1)%4}")
        A(f"L_k{j}:")
        A("s_cmp_lg_u32 s60, 0"); A(f"s_cbranch_scc1 L_ewk{j}")
        A("s_waitcnt vmcnt(24)")
        A(f"L_kgo{j}:")
        kproc(RG[j], j if j % 2 == 0 else None, j)
        A(f"s_branch L_refill{j}")
    for j in range(4):
        def ticket():
            A("s_mov_b64 exec, 1")
            A(f"ds_add_rtn_u32 v{TK}, v{ZERO}, v{ONE} offset:{L_TK}")
            A(f"ds_read_b32 v{FU}, v{ZERO} offset:{L_FU}")
            A("s_mov_b64 exec, -1")
        A(f"L_body{j}:")
        if diag: A("s_add_u32 s43, s43, 1")
        A(f"s_lshr_b32 s65, s{U[j]}, 6"); A("s_cmp_lg_u32 s65, s50"); A(f"s_cbranch_scc1 L_tcall{j}")
        A(f"L_tok{j}:")
        s_addr(j)
        A("s_bitcmp0_b32 s50, 0"); A(f"s_cbranch_scc1 L_k{j}")
        A(f"ds_read_b128 v[{S}:{S+3}], v7"); A(f"ds_read_b128 v[{S+4}:{S+7}], v7 offset:16")
        if j % 2 == 0:
            A(f"s_bitcmp1_b32 s56, {j}"); A("s_cselect_b64 vcc, -1, 0")
            A(f"v_mov_b32 v{SELL}, s40"); A(f"v_mov_b32 v{SELH}, s41")
            A(f"v_cndmask_b32 v{SELL}, v{SELL}, v{SLS}, vcc"); A(f"v_cndmask_b32 v{SELH}, v{SELH}, v{SHS}, vcc")
            sl, sh = f"v{SELL}", f"v{SELH}"
        else:
            sl, sh = "s40", "s41"
        A("s_waitcnt lgkmcnt(0)")
        for i in range(8): A(f"v_fma_f32 v{S+i}, v{S+i}, s42, -v{MC}")
        for i in range(8): A(f"v_exp_f32 v{S+i}, v{S+i}")
        for p in range(4): A(f"v_cvt_pk_bf16_f32 v{S+p}, v{S+2*p}, v{S+2*p+1}")
        for u in range(4):
            for p in range(4): A(f"v_and_b32 v{PM+u*4+p}, v{S+p}, v{MK+u}")
        A("s_cmp_lg_u32 s60, 0"); A(f"s_cbranch_scc1 L_ewv{j}")
        A("s_waitcnt vmcnt(24)")
        A(f"L_vgo{j}:")
        src = RG[j]
        for w in range(4):
            for p in range(4):
                A(f"v_perm_b32 v{T+p}, v{src+(2*p+1)*4+w}, v{src+(2*p)*4+w}, {sl}")
            for p in range(4):
                A(f"v_perm_b32 v{T+4+p}, v{src+(2*p+1)*4+w}, v{src+(2*p)*4+w}, {sh}")
            a0 = O; a1 = O + 4
            A(f"v_mfma_f32_16x16x32_bf16 v[{a0}:{a0+3}], v[{T}:{T+3}], v[{PM+w*4}:{PM+w*4+3}], v[{a0}:{a0+3}]")
            nop(1)
            A(f"v_mfma_f32_16x16x32_bf16 v[{a1}:{a1+3}], v[{T+4}:{T+7}], v[{PM+w*4}:{PM+w*4+3}], v[{a1}:{a1+3}]")
        A(f"L_refill{j}:")
        A("s_cmp_lg_u32 s60, 0"); A(f"s_cbranch_scc1 L_endstep{j}")
        if N2 < 24: A(f"s_waitcnt vmcnt({N2})")
        ticket()
        A("s_waitcnt lgkmcnt(0)")
        A(f"v_readfirstlane_b32 s{U[j]}, v{TK}"); A(f"v_readfirstlane_b32 s3, v{FU}")
        A(f"s_cmp_ge_u32 s{U[j]}, 256"); A(f"s_cbranch_scc1 L_endstep{j}")
        A(f"s_lshr_b32 s36, s{U[j]}, 6"); A("s_cmp_lg_u32 s36, s51"); A(f"s_cbranch_scc1 L_ldph{j}")
        A(f"L_ldok{j}:")
        tile_off(U[j])
        if j % 2 == 0:
            A(f"s_cmp_ge_u32 s{U[j]}, s3"); A("s_cselect_b32 s38, -1, 0")
            A(f"s_bitset0_b32 s56, {j}"); A(f"s_and_b32 s37, s38, {1 << j}"); A("s_or_b32 s56, s56, s37")
            A(f"v_and_b32 v1, s38, v{LD_}")
        load(RG[j], j % 2 == 0)
    A("s_branch L_body0")
    A("L_exit:")
    stamp(3)
    if diag: A("s_waitcnt lgkmcnt(0)")
    A("s_mov_b32 s65, 4")
    A("s_call_b64 s[16:17], L_trans")
    woload()
    A("s_waitcnt lgkmcnt(0)")
    A("s_barrier")
    stamp(4)
    for w in range(4): A(f"ds_read_b128 v[{24+w*4}:{27+w*4}], v{CRA} offset:{L_OA + w*WSZ}")
    A(f"ds_read_b32 v40, v{CWA} offset:{L_W}")
    A(f"ds_read_b32 v41, v{ZERO} offset:{L_FU+4}")
    A("s_waitcnt lgkmcnt(0)")
    for i in range(4):
        A(f"v_add_f32 v{24+i}, v{24+i}, v{28+i}"); A(f"v_add_f32 v{32+i}, v{32+i}, v{36+i}")
    for i in range(4): A(f"v_add_f32 v{48+i}, v{24+i}, v{32+i}")
    for i in range(4): A(f"v_mul_f32 v{48+i}, v{48+i}, v40")
    for i in range(4): A(f"v_min_u32 v{48+i}, -2, v{48+i}")
    A(f"buffer_store_dwordx4 v[48:51], v{PBA}, s[20:23], s32 offen sc1")
    stamp(5)
    LD = 64; LM = 80; WT = 96; DD = 128
    OWA, ORA, RDA, GRA = 56, 57, 58, 59
    C("first hand-off: wave w gathers dims 32w..32w+31 of its head; lane (p = l&7, u = l>>3): slot (b = u>>1, split = (u&1) + 2i)")
    A("v_lshrrev_b32 v8, 4, v0"); A(f"v_mul_u32_u24 v9, {8*PSTR}, v8")
    A("v_bfe_u32 v10, v0, 3, 1"); A(f"v_mul_u32_u24 v10, {PSTR}, v10"); A("v_add_u32 v9, v9, v10")
    A("v_and_b32 v11, 7, v0"); A("s_lshl_b32 s36, s33, 7"); A("v_lshl_add_u32 v10, v11, 4, v9"); A("v_add_u32 v10, s36, v10")
    for i in range(4): A(f"s_add_u32 s{52+i}, s57, {2*i*PSTR}")
    A("s_lshl_b32 s36, s33, 8"); A(f"s_add_u32 s36, s36, {L_OB}")
    A(f"v_lshlrev_b32 v{OWA}, 6, v8"); A(f"v_lshl_add_u32 v{OWA}, v11, 3, v{OWA}"); A(f"v_add_u32 v{OWA}, s36, v{OWA}")
    A("v_and_b32 v12, 3, v0"); A(f"v_lshlrev_b32 v{ORA}, 6, v12"); A(f"v_lshl_add_u32 v{ORA}, v8, 4, v{ORA}"); A(f"v_add_u32 v{ORA}, s36, v{ORA}")
    A(f"s_mul_i32 s36, s33, {HS}"); A(f"v_lshl_add_u32 v{RDA}, v0, 3, s36"); A(f"v_add_u32 v{FLA}, {L_R2}, v{FLA}")
    A("v_lshrrev_b32 v13, 3, v0"); A(f"v_lshlrev_b32 v{GRA}, 12, v13"); A(f"v_lshl_add_u32 v{GRA}, v11, 4, v{GRA}")
    A("s_lshl_b32 s61, s28, 2"); A("s_add_u32 s61, s61, s59"); A("s_lshl_b32 s61, s61, 17"); A(f"s_add_u32 s61, s61, {WS_OP:#x}")
    A("s_lshl_b32 s63, s29, 2"); A("s_add_u32 s63, s63, s58")
    A("s_lshl_b32 s36, s33, 3"); A("s_add_u32 s36, s36, s63"); A("v_add_u32 v13, s36, v13"); A("v_and_b32 v13, 31, v13")
    A(f"v_lshl_add_u32 v{GRA}, v13, 7, v{GRA}")
    A("s_lshl_b32 s37, s33, 15"); A("s_add_u32 s62, s61, s37")
    A("s_lshl_b32 s36, s63, 12"); A("s_add_u32 s61, s61, s36"); A("s_lshl_b32 s37, s33, 10"); A("s_add_u32 s61, s61, s37")
    srd(12, 48, 49, 8192)
    A("s_lshr_b32 s3, s63, 3"); A("s_lshl_b32 s3, s3, 11"); A("s_lshl_b32 s37, s28, 10"); A("s_add_u32 s3, s3, s37")
    A("s_lshl_b32 s37, s59, 8"); A("s_add_u32 s3, s3, s37"); A("s_and_b32 s37, s63, 7"); A("s_lshl_b32 s37, s37, 5"); A("s_add_u32 s3, s3, s37")
    A("v_lshlrev_b32 v14, 3, v11"); A("s_lshl_b32 s37, s33, 6"); A("v_add_u32 v15, s37, v14")
    A("v_readfirstlane_b32 s50, v41")
    for i in range(4): A(f"s_mov_b64 s[{94+2*i}:{95+2*i}], -1")
    if WARM:
        A("s_cmp_eq_u32 s50, 0"); A("s_cbranch_scc1 L_nowarm")
        A(f"buffer_load_dwordx4 v[32:35], v{VB}, s[20:23], s61 offen sc1")
        A("s_waitcnt vmcnt(2)"); A("s_branch L_warmed")
        A("L_nowarm:")
    A("s_waitcnt vmcnt(1)")
    A("L_warmed:")
    transpose(WR, WT)
    C("a line read before it is written stays stale in L2 for a while: start reading once the own partials have arrived")
    A("s_waitcnt vmcnt(0)")
    A("L_p1:")
    for i in range(4):
        A(f"s_mov_b64 exec, s[{94+2*i}:{95+2*i}]")
        A(f"s_cbranch_execz L_p1s{i}")
        A(f"buffer_load_dwordx4 v[{LD+i*4}:{LD+i*4+3}], v10, s[20:23], s{52+i} offen sc1")
        A(f"L_p1s{i}:")
    A("s_mov_b64 exec, -1")
    A("s_waitcnt vmcnt(0)")
    for i in range(4): A(f"v_max3_u32 v{16+i}, v{LD+i*4}, v{LD+i*4+1}, v{LD+i*4+2}")
    for i in range(4): A(f"v_max_u32 v{16+i}, v{16+i}, v{LD+i*4+3}")
    for i in range(4): A(f"v_cmp_eq_u32 s[{94+2*i}:{95+2*i}], -1, v{16+i}")
    for k in range(4):
        A(f"v_add_f32 v{24+k}, v{LD+k}, v{LD+4+k}"); A(f"v_add_f32 v{28+k}, v{LD+8+k}, v{LD+12+k}")
    for k in range(4): A(f"v_add_f32 v{24+k}, v{24+k}, v{28+k}")
    A("s_or_b64 s[36:37], s[94:95], s[96:97]"); A("s_or_b64 s[38:39], s[98:99], s[100:101]"); A("s_or_b64 s[38:39], s[38:39], s[36:37]")
    A("s_cbranch_scc0 L_got1")
    spin("L_p1")
    A("L_got1:")
    stamp(6)
    for i in range(4): A(f"v_add_f32_dpp v{24+i}, v{24+i}, v{24+i} {ROR8}")
    A("v_cvt_pk_bf16_f32 v32, v24, v25"); A("v_cvt_pk_bf16_f32 v33, v26, v27")
    A(f"ds_write_b64 v{OWA}, v[32:33]")
    A(f"ds_read_b128 v[36:39], v{ORA}")
    A("s_waitcnt lgkmcnt(0)")
    for u in range(4):
        for p in range(4): A(f"v_and_b32 v{40+u*4+p}, v{36+p}, v{MK+u}")
        if u:
            for a_ in range(2):
                jn = 2*(u-1) + a_; c = "0" if u == 1 else f"v[{DD+a_*4}:{DD+a_*4+3}]"
                A(f"v_mfma_f32_16x16x32_bf16 v[{DD+a_*4}:{DD+a_*4+3}], v[{WT+jn*4}:{WT+jn*4+3}], v[{40+(u-1)*4}:{43+(u-1)*4}], {c}")
    for a_ in range(2):
        A(f"v_mfma_f32_16x16x32_bf16 v[{DD+a_*4}:{DD+a_*4+3}], v[{WT+(6+a_)*4}:{WT+(6+a_)*4+3}], v[52:55], v[{DD+a_*4}:{DD+a_*4+3}]")
    nop(8)
    for r in range(4): A(f"ds_write2_b32 v{FLA}, v{DD+r}, v{DD+4+r} offset0:{r*8} offset1:{r*8+1}")
    A("s_waitcnt lgkmcnt(0)")
    A("s_barrier")
    stamp(7)
    for w in range(4): A(f"ds_read_b64 v[{16+w*2}:{17+w*2}], v{RDA} offset:{L_R2 + w*WSZ}")
    A(f"v_mov_b32 v25, v{TG}"); A(f"v_mov_b32 v27, v{TG}")
    A("s_waitcnt lgkmcnt(0)")
    A("v_add_f32 v16, v16, v18"); A("v_add_f32 v17, v17, v19"); A("v_add_f32 v20, v20, v22"); A("v_add_f32 v21, v21, v23")
    A("v_add_f32 v24, v16, v20"); A("v_add_f32 v26, v17, v21")
    C("second hand-off: tagged partial outputs; every workgroup finishes 16 output elements")
    A("s_mov_b64 vcc, -1"); A("v_lshlrev_b32 v8, 2, v0")
    A("s_cmp_lg_u32 s50, 0"); A("s_cbranch_scc1 L_opl")
    A(f"buffer_store_dwordx4 v[24:27], v{GRA}, s[20:23], s62 offen sc1")
    A("s_waitcnt vmcnt(0)")
    A("s_branch L_poll2")
    A("L_opl:")
    A(f"buffer_store_dwordx4 v[24:27], v{GRA}, s[20:23], s62 offen")
    stamp(10)
    A("L_poll2:")
    A("s_mov_b64 exec, vcc")
    A(f"buffer_load_dwordx4 v[32:35], v{VB}, s[20:23], s61 offen sc1")
    A("s_mov_b64 exec, -1")
    A("s_waitcnt vmcnt(0)")
    A(f"v_xor_b32 v6, v33, v{TG}"); A(f"v_xor_b32 v7, v35, v{TG}"); A("v_or_b32 v6, v6, v7")
    A("v_cmp_ne_u32 vcc, 0, v6")
    A("s_cbranch_vccz L_got2")
    spin("L_poll2")
    A("L_got2:")
    A(f"v_add_f32_dpp v32, v32, v32 {ROR8}"); A(f"v_add_f32_dpp v34, v34, v34 {ROR8}")
    A("v_mov_b32 v33, v32"); A("v_mov_b32 v35, v34"); nop(1)
    A("v_permlane32_swap_b32 v32, v33"); A("v_permlane32_swap_b32 v34, v35")
    A("v_add_f32 v32, v32, v33"); A("v_add_f32 v34, v34, v35")
    A("v_mov_b32 v33, v32"); A("v_mov_b32 v35, v34"); nop(1)
    A("v_permlane16_swap_b32 v32, v33"); A("v_permlane16_swap_b32 v34, v35")
    A("v_add_f32 v32, v32, v33"); A("v_add_f32 v33, v34, v35")
    A("s_mov_b64 exec, 0xff")
    A(f"ds_write_b64 v15, v[32:33] offset:{L_Q}")
    A("s_waitcnt lgkmcnt(0)")
    A("s_barrier")
    A("s_cmp_lg_u32 s33, 0"); A("s_cbranch_scc1 L_sdone")
    A(f"ds_read2_b64 v[32:35], v14 offset0:{L_Q//8} offset1:{L_Q//8+8}")
    A(f"ds_read2_b64 v[36:39], v14 offset0:{L_Q//8+16} offset1:{L_Q//8+24}")
    A("s_waitcnt lgkmcnt(0)")
    A("v_add_f32 v32, v32, v34"); A("v_add_f32 v33, v33, v35"); A("v_add_f32 v36, v36, v38"); A("v_add_f32 v37, v37, v39")
    A("v_add_f32 v32, v32, v36"); A("v_add_f32 v33, v33, v37")
    A("v_cvt_pk_bf16_f32 v32, v32, v33")
    A("buffer_store_dword v32, v8, s[12:15], s3 offen")
    A("s_cmp_lg_u32 s2, 0"); A("s_cbranch_scc1 L_sdone")
    C("every workgroup has contributed to this result, so every workgroup has read the old tag")
    A(f"s_mov_b32 s37, {WS_EPOCH:#x}")
    A("s_mov_b64 exec, 1")
    A(f"buffer_store_dword v{TG}, v{ZERO}, s[20:23], s37 offen sc1")
    A("L_sdone:")
    if diag:
        A("s_waitcnt vmcnt(0)")
        stamp(9)
        A("s_cmp_lg_u32 s33, 0"); A("s_cbranch_scc1 L_end2")
        stamps_out(11, 0, "s43")
        A("L_end2:")
    A("s_endpgm")

    A('.section .rodata,"a"'); A(".p2align 6"); A(f".amdhsa_kernel {NAME}_kernel")
    A("  .amdhsa_next_free_vgpr 256"); A("  .amdhsa_next_free_sgpr 102"); A("  .amdhsa_accum_offset 256")
    A("  .amdhsa_group_segment_fixed_size 0"); A("  .amdhsa_kernarg_size 104"); A("  .amdhsa_user_sgpr_count 2")
    A("  .amdhsa_user_sgpr_kernarg_segment_ptr 1"); A("  .amdhsa_system_sgpr_workgroup_id_x 1"); A(".end_amdhsa_kernel")
    return "\n".join(x for x in L if x) + "\n"

HEADER = """
Two GQA decode blocks in one launch, 256 workgroups (one per CU) of 4 streaming waves + 1 helper wave.
Every workgroup owns 2048 keys of one (batch, kv head) in both blocks and streams K_A, V_A, K_B, V_B in that order:
scores go to LDS, the workgroup's true maximum is taken after each K phase, P*V is accumulated with MFMA.
q = x*wq is computed in 256 slices by the helper waves and handed over through d_ws (tagged granules).
The 8 workgroups of a pair exchange maximum and sum during the V phase, so the partials are published already weighted;
they are summed and multiplied by wo in 128x128 tiles, then reduced over heads; both hand-offs go through d_ws.
"""

def emit(V):
    for n, kw in V.items():
        open(n + ".s", "w").write(gen(False, **kw))
        open(n + "_d.s", "w").write(gen(True, **kw))
    print(" ".join(n + ".s" for n in V)); print(" ".join(n + "_d.s" for n in V))
    print(",".join(f'"work/{n}.s","work/{n}_d.s"' for n in V))

if __name__ == "__main__":
    emit({"w25a": {}, "w25b": dict(WARM=0)})
```

```python
import sys, math, struct
NAME = "concat_heads__gqa_block_cached__gqa_block_cached__decode"
def f2u(x): return struct.unpack("<I", struct.pack("<f", x))[0]
CSC = f2u(math.log2(math.e) / math.sqrt(128.0))

WS_Q = 0
WS_EPOCH = 0x20000
WS_PG = 0x30000; PGS = 1152
WS_DIAG = 0xC0000
WS_OP = 0x100000
WS_PO = 0x200000; PSTR = 2048 + 128; HPS = 512; BSTR = 256 * PSTR
WS_ML = 0x24000
NEG = f2u(-3.0e38); NEGC = f2u(-3.0e38 * math.log2(math.e) / math.sqrt(128.0))
WS_XC = 0x2C000
WS_USED = 0x340000
L_Q = 0; L_TK = 2048; L_TAG = L_TK + 4; L_FU = L_TK + 8; L_QF = L_TK + 16; L_CNT = L_TK + 24
L_W = L_TK + 32; L_MX = L_TK + 64; L_LA = L_MX + 128; L_OB = 2560; L_RED = 3584; L_OA = 6144; HS = 544; WSZ = 4*HS; L_S = L_OA + 8*WSZ; L_XB = L_S + 65536
L_R2 = L_S
SPIN = 1 << 20
KTAG = 0x9E3779B1

def gen(diag=False, N0=2, EV=((64,"b"),(80,"p0"),(112,"g0"),(128,"b"),(150,"x0"),(192,"b"),(205,"p1"),(214,"b"),(222,"g1"),(230,"b"),(242,"b")), TH=5, KAP=36, N2=16, LOC=True, WARM=1, PW=8):
    L = []
    NX = 1
    L_TOT = L_XB
    def A(s): L.append(s)
    def C(s): L.append("; " + s)
    def nop(n):
        while n > 0:
            k = min(n, 16); A(f"s_nop {k-1}"); n -= k
    def srd(d, lo, hi, nbytes):
        A(f"s_mov_b32 s{d}, s{lo}"); A(f"s_mov_b32 s{d+1}, s{hi}")
        A(f"s_mov_b32 s{d+2}, {nbytes:#x}"); A(f"s_mov_b32 s{d+3}, 0x20000")
    def stamp(i):
        if diag: A(f"s_memrealtime s[{66+2*i}:{67+2*i}]")
    def stamps_out(n, role, extra=None):
        if diag:
            A("s_waitcnt lgkmcnt(0)")
            A("s_mov_b64 exec, 1")
            A("s_lshl_b32 s37, s2, 7"); A(f"s_add_u32 s37, s37, {WS_DIAG + role*64:#x}")
            A("v_mov_b32 v1, 0")
            for i in range(n):
                A(f"v_mov_b32 v2, s{66+2*i}")
                A(f"buffer_store_dword v2, v1, s[20:23], s37 offen offset:{i*4}")
            if extra:
                A(f"v_mov_b32 v2, {extra}")
                A(f"buffer_store_dword v2, v1, s[20:23], s37 offen offset:56")
            A("s_getreg_b32 s38, hwreg(HW_REG_XCC_ID)")
            A("v_mov_b32 v2, s38")
            A(f"buffer_store_dword v2, v1, s[20:23], s37 offen offset:60")
    def spin(label):
        A("s_sub_u32 s64, s64, 1"); A("s_cmp_gt_i32 s64, 0"); A(f"s_cbranch_scc1 {label}")
    def transpose(src, dst):
        for w in range(4):
            for p in range(4):
                A(f"v_perm_b32 v{dst+(2*w)*4+p}, v{src+(2*p+1)*4+w}, v{src+(2*p)*4+w}, s40")
                A(f"v_perm_b32 v{dst+(2*w+1)*4+p}, v{src+(2*p+1)*4+w}, v{src+(2*p)*4+w}, s41")
    ROR = lambda k: f"row_ror:{k} row_mask:0xf bank_mask:0xf"
    ROR8 = ROR(8)

    A(f"; @launch grid=(256,1,1) block=(320,1,1) lds={L_TOT}")
    for line in HEADER.strip().splitlines(): C(line)
    A('.amdgcn_target "amdgcn-amd-amdhsa--gfx950"')
    A(".text")
    A(f".globl {NAME}_kernel"); A(".p2align 8"); A(f".type {NAME}_kernel,@function"); A(f"{NAME}_kernel:")
    A("s_cmp_ge_u32 s2, 256"); A("s_cbranch_scc1 L_end")
    stamp(0)
    C("s28 = block of the weight role, s29 = kv head, s30 = weight slice, s34 = batch, s35 = split, s31 = kvh*4+b, s32 = own slot")
    A("s_bfe_u32 s28, s2, 0x10001")
    A("s_mul_i32 s32, s28, 40")
    A("s_load_dwordx2 s[16:17], s[0:1], s32")
    A("s_add_u32 s32, s32, 24")
    A("s_load_dwordx4 s[44:47], s[0:1], s32")
    A("s_load_dwordx2 s[20:21], s[0:1], 96")
    A("s_load_dwordx4 s[4:7], s[0:1], 8")
    A("s_load_dwordx4 s[8:11], s[0:1], 48")
    A("s_load_dwordx2 s[48:49], s[0:1], 80")
    A("v_lshrrev_b32 v1, 6, v0")
    A("v_and_b32 v0, 63, v0")
    A("v_readfirstlane_b32 s33, v1")
    A("s_lshr_b32 s34, s2, 6")
    A("s_bfe_u32 s29, s2, 0x20004"); A("s_lshl_b32 s29, s29, 1"); A("s_bfe_u32 s36, s2, 0x10002"); A("s_add_u32 s29, s29, s36")
    A("s_bfe_u32 s37, s2, 0x10003")
    A("s_and_b32 s35, s2, 3"); A("s_lshl_b32 s35, s35, 1"); A("s_add_u32 s35, s35, s37")
    A("s_and_b32 s30, s35, 3"); A("s_lshl_b32 s36, s34, 2"); A("s_add_u32 s30, s30, s36")
    A("s_lshl_b32 s31, s29, 2"); A("s_add_u32 s31, s31, s34")
    A("s_lshl_b32 s32, s31, 3"); A("s_add_u32 s32, s32, s35"); A(f"s_mul_i32 s32, s32, {PSTR}"); A(f"s_add_u32 s32, s32, {WS_PO:#x}")
    A("s_mov_b32 s40, 0x05040100"); A("s_mov_b32 s41, 0x07060302")
    A(f"s_mov_b32 s64, {SPIN}")
    A(f"s_mov_b32 s22, {WS_USED:#x}"); A("s_mov_b32 s23, 0x20000")
    A("s_cmp_lg_u32 s33, 0"); A("s_cbranch_scc1 L_stream")

    C("=============== helper wave: q projection slice, q hand-off, load balancing ===============")
    B = [16 + 32*i for i in range(5)]
    X = 176
    A("s_setprio 3")
    A("v_bfe_u32 v1, v0, 2, 2"); A("v_lshlrev_b32 v1, 18, v1")
    A("v_lshrrev_b32 v2, 4, v0"); A("v_lshl_add_u32 v1, v2, 16, v1")
    A("v_and_b32 v2, 3, v0"); A("v_lshl_add_u32 v1, v2, 4, v1")
    A("v_lshlrev_b32 v3, 10, v2")
    A("v_bfe_u32 v2, v0, 2, 2"); A("v_lshl_add_u32 v3, v2, 6, v3")
    A("v_lshrrev_b32 v2, 4, v0"); A("v_lshl_add_u32 v3, v2, 4, v3")
    A("s_lshl_b32 s56, s29, 10"); A("s_lshl_b32 s37, s30, 6"); A("s_add_u32 s56, s56, s37")
    A("v_mov_b32 v14, 0"); A("v_mov_b32 v8, 0"); A("v_mov_b32 v9, 0"); A("v_mov_b32 v10, 0"); A("v_mov_b32 v11, 0")
    A(f"ds_write_b128 v14, v[8:11] offset:{L_QF}")
    A(f"ds_write_b64 v14, v[8:9] offset:{L_FU}")
    A("v_lshlrev_b32 v2, 4, v0"); A("v_lshlrev_b32 v13, 3, v0"); A("v_mov_b32 v8, 1")
    A(f"s_mov_b32 s37, {WS_EPOCH:#x}")
    A("s_lshl_b32 s38, s31, 11"); A("s_mov_b32 s54, 0")
    A("s_mov_b32 s18, 4096"); A("s_mov_b32 s19, 0x20000"); A("s_mov_b32 s14, 0x400000"); A("s_mov_b32 s15, 0x20000")
    A("s_waitcnt lgkmcnt(0)")
    A("s_mov_b32 s12, s44"); A("s_mov_b32 s13, s45")
    C("hand-off tag of the previous launch: only used to tell this launch's hand-offs from older ones")
    A("buffer_load_dword v15, v14, s[20:23], s37 offen sc1")
    def taginit(n):
        A(f"s_waitcnt vmcnt({n})")
        A(f"v_add_u32 v15, {KTAG:#x}, v15")
        A(f"v_mov_b32 v10, {16 + 4*NX}"); A("v_mov_b32 v11, v15")
        A("v_readfirstlane_b32 s55, v15")
        A(f"ds_write_b64 v14, v[10:11] offset:{L_TK}")
    for rho in range(4):
        A(f"buffer_load_dwordx4 v[{X+rho*4}:{X+rho*4+3}], v3, s[16:19], 0 offen offset:{rho*256}")
    for rho in range(4):
        for e in range(8):
            off = (rho * 128 + e) * 8192
            r = B[rho+1] + e * 4
            if off: A(f"s_add_u32 s37, s56, {off:#x}")
            A(f"buffer_load_dwordx4 v[{r}:{r+3}], v1, s[12:15], s{37 if off else 56} offen nt")
    A("s_barrier")
    taginit(36)
    stamp(1)
    A("v_lshrrev_b32 v4, 4, v0"); A("v_bfe_u32 v5, v0, 2, 2")
    A("v_cmp_eq_u32 s[58:59], v4, v5")
    A("v_lshlrev_b32 v4, 9, v4"); A("v_and_b32 v5, 3, v0"); A("v_lshl_add_u32 v4, v5, 7, v4")
    A("v_lshrrev_b32 v6, 4, v0"); A("v_lshlrev_b32 v6, 7, v6")
    A("v_lshl_add_u32 v6, v5, 5, v6")
    A("v_bfe_u32 v5, v0, 2, 2"); A("v_lshl_add_u32 v6, v5, 2, v6")
    A(f"v_add_u32 v6, {L_RED}, v6"); A("v_add_u32 v7, 1024, v6")
    A("v_lshrrev_b32 v12, 4, v0"); A("v_lshlrev_b32 v12, 11, v12")
    A("v_and_b32 v5, 15, v0"); A("v_lshl_add_u32 v12, v5, 3, v12")
    A("s_lshl_b32 s36, s28, 3"); A("s_add_u32 s36, s36, s29"); A("s_lshl_b32 s36, s36, 13"); A("s_lshl_b32 s37, s30, 7"); A("s_add_u32 s36, s36, s37")
    ACC = B[4]
    for rho in range(4):
        A(f"s_waitcnt vmcnt({24 - rho*8})")
        if rho == 0: stamp(3)
        if rho == 3: stamp(4)
        transpose(B[rho+1], B[rho])
    nop(1)
    for rho in range(4):
        for jn in range(8):
            a = ACC + jn*4; t = B[rho] + jn*4
            c = "0" if rho == 0 else f"v[{a}:{a+3}]"
            A(f"v_mfma_f32_16x16x32_bf16 v[{a}:{a+3}], v[{t}:{t+3}], v[{X+rho*4}:{X+rho*4+3}], {c}")
    A("s_mov_b64 exec, s[58:59]")
    nop(1)
    for jn in range(8):
        A(f"ds_write_b128 v4, v[{ACC+jn*4}:{ACC+jn*4+3}] offset:{L_RED + jn*16}")
    A("s_mov_b64 exec, -1")
    A("ds_read2_b32 v[16:17], v6 offset0:0 offset1:4")
    A("ds_read2_b32 v[18:19], v6 offset0:128 offset1:132")
    A("ds_read2_b32 v[20:21], v7 offset0:0 offset1:4")
    A("ds_read2_b32 v[22:23], v7 offset0:128 offset1:132")
    A("s_waitcnt lgkmcnt(0)")
    A("v_add_f32 v16, v16, v18"); A("v_add_f32 v17, v17, v19"); A("v_add_f32 v20, v20, v22"); A("v_add_f32 v21, v21, v23")
    A("v_add_f32 v16, v16, v20"); A("v_add_f32 v17, v17, v21")
    A("v_cvt_pk_bf16_f32 v10, v16, v17")
    A(f"buffer_store_dwordx2 v[10:11], v12, s[20:23], s36 offen offset:{WS_Q} sc1")
    stamp(2)
    A("s_waitcnt vmcnt(0)")
    A("L_pollq:")
    A(f"buffer_load_dwordx4 v[16:19], v2, s[20:23], s38 offen offset:{WS_Q} sc1")
    A(f"buffer_load_dwordx4 v[20:23], v2, s[20:23], s38 offen offset:{WS_Q+1024} sc1")
    A("s_waitcnt vmcnt(0)")
    A("v_xor_b32 v17, s55, v17"); A("v_xor_b32 v19, s55, v19"); A("v_xor_b32 v21, s55, v21"); A("v_xor_b32 v23, s55, v23")
    A("v_or3_b32 v17, v17, v19, v21"); A("v_or_b32 v17, v17, v23")
    A("v_cmp_ne_u32 vcc, 0, v17")
    A("s_cbranch_vccz L_gotq")
    spin("L_pollq")
    A("L_gotq:")
    A(f"ds_write2_b32 v13, v16, v18 offset0:{L_Q//4} offset1:{L_Q//4+1}")
    A(f"ds_write2_b32 v13, v20, v22 offset0:{L_Q//4+128} offset1:{L_Q//4+129}")
    A(f"ds_write_b32 v9, v8 offset:{L_QF}")
    A("s_cmp_lg_u32 s54, 0"); A("s_cbranch_scc1 L_gotw")
    stamp(5); stamp(6)
    if diag: A(f"s_sub_u32 s43, {SPIN}, s64")
    A("s_mov_b32 s54, 1"); A("s_add_u32 s38, s38, 0x10000"); A("v_add_u32 v13, 1024, v13"); A("v_mov_b32 v9, 4")
    A("s_branch L_pollq")
    A("L_gotw:")
    if diag: A("s_mov_b32 s57, 128")
    C("compute die of this workgroup, for the 32 workgroups that exchange partial outputs at the end")
    A("s_getreg_b32 s53, hwreg(HW_REG_XCC_ID, 0, 4)")
    A("s_and_b32 s52, s2, 7"); A("s_lshl_b32 s52, s52, 10"); A(f"s_add_u32 s52, s52, {WS_XC:#x}")
    A("s_lshr_b32 s36, s2, 3"); A("s_lshl_b32 s36, s36, 5"); A("s_add_u32 s36, s36, s52")
    A("v_mov_b32 v10, s53")
    A("s_mov_b64 exec, 1")
    A("buffer_store_dwordx2 v[10:11], v14, s[20:23], s36 offen sc1")
    A("s_mov_b64 exec, -1")
    A(f"s_mov_b32 s6, {WS_PG:#x}"); A("s_lshr_b32 s7, s2, 2"); A(f"s_mul_i32 s7, s7, {PGS}"); A("s_and_b32 s36, s2, 3"); A("s_lshl_b32 s36, s36, 2"); A("s_add_u32 s7, s7, s36")
    A("s_bfe_u32 s8, s2, 0x30003"); A(f"s_and_b32 s8, s8, {PW-1}"); A(f"s_mul_i32 s8, s8, {PGS}")
    wl = sorted({7*k + r for k in range(8) for r in range(PW)})
    wm = sum(1 << x for x in wl)
    A(f"s_mov_b32 s36, {wm & 0xffffffff:#x}"); A(f"s_mov_b32 s37, {wm >> 32:#x}"); A("s_lshr_b32 s38, s2, 2")
    A("s_bitcmp1_b64 s[36:37], s38"); A("s_cselect_b32 s55, 1, 0")
    A("s_lshl_b32 s4, s31, 9"); A(f"s_add_u32 s4, s4, {WS_ML:#x}"); A("s_lshl_b32 s5, s35, 6"); A("s_add_u32 s5, s5, s4")
    A(f"s_mov_b32 s42, {CSC:#x}")
    A("v_and_b32 v3, 3, v0"); A("v_lshlrev_b32 v3, 2, v3"); A("v_and_b32 v4, 0x1f0, v2")
    assert sum(k == "b" for _, k in EV) <= 8
    for tk, kind in EV:
        A(f"s_movk_i32 s9, {tk}")
        if kind != "b": A(f"s_mov_b32 s11, {int(kind[1])}")
        if diag: A("s_waitcnt lgkmcnt(0)")
        A(f"s_call_b64 s[58:59], L_ev{kind[0]}")
    A("s_branch L_hdone")
    def waittk(tag):
        A("s_sub_u32 s10, s9, 5")
        A(f"L_prog{tag}:")
        A(f"ds_read_b32 v10, v14 offset:{L_TK}")
        A("s_waitcnt lgkmcnt(0)")
        A("v_readfirstlane_b32 s37, v10")
        if diag:
            for k, th in enumerate((64, 128, 192)):
                A(f"s_cmp_ge_u32 s37, {th}"); A(f"s_cbranch_scc1 L_pg{k}{tag}"); stamp(8 + k); A(f"L_pg{k}{tag}:")
        A("s_cmp_ge_u32 s37, s9"); A(f"s_cbranch_scc1 L_progdone{tag}")
        A("s_cmp_ge_u32 s37, s10"); A(f"s_cbranch_scc1 L_progs{tag}")
        A(f"s_sleep {8 if diag else 16}")
        A(f"L_progs{tag}:")
        A("s_sleep 1")
        spin(f"L_prog{tag}")
        A(f"L_progdone{tag}:")
    C("load balancing (speed only): at a few batch counts publish the time and compare it with 32 other workgroups;")
    C("a workgroup that is behind loads full lines only for a while, which gives it a larger share of the bandwidth")
    A("L_evb:")
    waittk("b")
    QD = [12, 16, 24, 28, 32, 44, 48, 96]
    A("s_memrealtime s[60:61]")
    A("s_add_u32 s36, s6, s7"); A("s_add_u32 s37, s6, s8")
    A("s_add_u32 s62, s20, s37"); A("s_addc_u32 s63, s21, 0")
    A("s_waitcnt lgkmcnt(0)")
    A("s_cmp_eq_u32 s55, 0"); A("s_cbranch_scc1 L_evb1")
    A("v_mov_b32 v20, s60")
    A("s_mov_b64 exec, 1")
    A("buffer_store_dword v20, v14, s[20:23], s36 offen sc1")
    A("s_mov_b64 exec, -1")
    A("L_evb1:")
    for k, q in enumerate(QD): A(f"s_load_dwordx4 s[{q}:{q+3}], s[62:63], {7*k*PGS:#x} glc")
    A(f"s_add_u32 s6, s6, {64*PGS}"); A("s_mov_b32 s36, 0")
    A("s_waitcnt lgkmcnt(0)")
    A(f"ds_read_b32 v10, v14 offset:{L_TK}")
    for q in QD:
        for i in range(4):
            A(f"s_sub_u32 s37, s60, s{q+i}"); A("s_cmpk_lt_u32 s37, 1000"); A("s_cselect_b32 s37, s37, 0"); A("s_add_u32 s36, s36, s37")
    A("s_lshr_b32 s36, s36, 5"); A(f"s_sub_i32 s36, s36, {TH}"); A("s_max_i32 s36, s36, 0"); A(f"s_mul_i32 s36, s36, {KAP}"); A("s_lshr_b32 s36, s36, 8")
    if diag: A("s_add_u32 s57, s57, s36")
    A("s_waitcnt lgkmcnt(0)")
    A("v_add_u32 v10, s36, v10")
    A(f"ds_write_b32 v14, v10 offset:{L_FU}")
    A("s_setpc_b64 s[58:59]")
    C("maximum and sum of this workgroup's keys, published as two tagged granules per head")
    A("L_evp:")
    waittk("p")
    A("s_lshl_b32 s36, s11, 2"); A("v_mov_b32 v5, s36")
    A("L_evp1:")
    A(f"ds_read_b32 v10, v5 offset:{L_CNT}")
    A("s_waitcnt lgkmcnt(0)")
    A("v_readfirstlane_b32 s37, v10")
    A("s_cmp_ge_u32 s37, 4"); A("s_cbranch_scc1 L_evp2")
    A("s_sleep 2")
    spin("L_evp1")
    A("L_evp2:")
    A("s_lshl_b32 s36, s11, 6"); A(f"s_add_u32 s36, s36, {L_MX}"); A("v_add_u32 v5, s36, v3")
    A("ds_read2_b32 v[16:17], v5 offset0:0 offset1:4"); A("ds_read2_b32 v[18:19], v5 offset0:8 offset1:12")
    A("ds_read2_b32 v[20:21], v5 offset0:32 offset1:36"); A("ds_read2_b32 v[22:23], v5 offset0:40 offset1:44")
    A("s_lshl_b32 s36, s11, 14"); A("s_add_u32 s36, s36, s5")
    A("s_waitcnt lgkmcnt(0)")
    A("v_max3_f32 v24, v16, v17, v18"); A("v_max_f32 v24, v24, v19"); A("v_mul_f32 v24, s42, v24")
    for i in range(4): A(f"v_mul_f32 v{16+i}, s42, v{16+i}")
    for i in range(4): A(f"v_sub_f32 v{16+i}, v{16+i}, v24")
    for i in range(4): A(f"v_exp_f32 v{16+i}, v{16+i}")
    A("v_mov_b32 v25, v15"); A("v_mov_b32 v27, v15")
    A("v_mul_f32 v26, v16, v20")
    for i in range(1, 4): A(f"v_fmac_f32 v26, v{16+i}, v{20+i}")
    A("s_mov_b64 exec, 15")
    A("buffer_store_dwordx4 v[24:27], v2, s[20:23], s36 offen sc1")
    A("s_mov_b64 exec, -1")
    A("s_setpc_b64 s[58:59]")
    C("weight of this workgroup's partial: exp2(M - M*) / L* over the 8 workgroups of the pair")
    A("L_evg:")
    waittk("g")
    A("s_lshl_b32 s36, s11, 14"); A("s_add_u32 s36, s36, s4")
    A("L_evg1:")
    A("buffer_load_dwordx4 v[16:19], v4, s[20:23], s36 offen sc1")
    A("s_waitcnt vmcnt(0)")
    A("v_xor_b32 v17, v15, v17"); A("v_xor_b32 v19, v15, v19"); A("v_or_b32 v17, v17, v19")
    A("v_cmp_ne_u32 vcc, 0, v17")
    A("s_cbranch_vccz L_evg2")
    A("s_sleep 8")
    spin("L_evg1")
    A("L_evg2:")
    def allsp(reg, op):
        A(f"{op}_dpp v{reg}, v{reg}, v{reg} {ROR(4)}"); nop(2)
        A(f"{op}_dpp v{reg}, v{reg}, v{reg} {ROR(8)}")
        A(f"v_mov_b32 v21, v{reg}"); nop(2)
        A(f"v_permlane16_swap_b32 v{reg}, v21"); A(f"{op} v{reg}, v{reg}, v21")
    A("v_mov_b32 v20, v16"); nop(2)
    allsp(20, "v_max_f32")
    A("v_sub_f32 v16, v16, v20"); A("v_sub_f32 v17, v24, v20")
    A("v_exp_f32 v16, v16"); A("v_exp_f32 v17, v17"); nop(1)
    A("v_mul_f32 v18, v18, v16"); nop(2)
    allsp(18, "v_add_f32")
    A("v_rcp_f32 v18, v18")
    A("s_lshl_b32 s36, s11, 4"); A("v_add_u32 v5, s36, v3")
    A("v_mul_f32 v17, v17, v18")
    A(f"ds_write_b32 v5, v17 offset:{L_W}")
    A("s_setpc_b64 s[58:59]")
    C("do all 32 share this workgroup's L2?  then a plain store is enough for the last hand-off")
    A("L_evx:")
    waittk("x")
    A("v_and_b32 v5, 31, v0"); A("v_lshlrev_b32 v5, 5, v5")
    A("L_evx1:")
    A("buffer_load_dwordx2 v[16:17], v5, s[20:23], s52 offen sc1")
    A("s_waitcnt vmcnt(0)")
    A("v_cmp_ne_u32 vcc, v15, v17")
    A("s_cbranch_vccz L_evx2")
    A("s_sleep 8")
    spin("L_evx1")
    A("s_setpc_b64 s[58:59]")
    A("L_evx2:")
    A("v_cmp_ne_u32 vcc, s53, v16")
    A("s_cbranch_vccnz L_evx3")
    A(f"ds_write_b32 v14, v8 offset:{L_FU+4}")
    A("L_evx3:")
    A("s_setpc_b64 s[58:59]")
    A("L_hdone:")
    stamp(7)
    if diag: A("s_lshl_b32 s43, s43, 16"); A("s_add_u32 s43, s43, s57")
    stamps_out(11, 1, "s43")
    A("L_end:")
    A("s_endpgm")

    C("=============== streaming waves ===============")
    S = 8; T = 16; O = 24
    M_, MC, LS, T0, TK, FU, TG, ZERO = 56, 57, 58, 59, 60, 61, 62, 63
    RG = [64, 96, 128, 160]; Q = 192; WR = 208
    LB, LD_, LB2, LD2 = 196, 197, 198, 199
    VB, ONE, SELL, SELH, SLS, SHS, SA, QAD, WOF, FLA = 241, 242, 244, 245, 246, 247, 249, 250, 251, 254
    T1 = 6; MK = 204; PM = 32; CRA, CWA, PBA = 200, 201, 202
    U = [52, 53, 54, 55]
    A("L_stream:")
    A("s_sub_u32 s33, s33, 1")
    C("range: MiB number x + 8y of every cache buffer, 64 KiB chunks alternate with the workgroup 8 further on")
    A("s_and_b32 s36, s2, 7"); A("s_lshr_b32 s37, s2, 4"); A("s_lshl_b32 s37, s37, 3"); A("s_add_u32 s36, s36, s37"); A("s_lshl_b32 s36, s36, 20")
    A("s_bfe_u32 s37, s2, 0x10003"); A("s_lshl_b32 s37, s37, 16"); A("s_add_u32 s36, s36, s37")
    C("K: lane (s, key = (l>>2)&3, u = l&3) holds the 16-byte chunk (s>>1)*8 + (u>>1)*4 + (s&1)*2 + (u&1)")
    A("v_lshrrev_b32 v5, 5, v0"); A("v_lshlrev_b32 v8, 7, v5"); A("v_bfe_u32 v5, v0, 4, 1"); A("v_lshl_add_u32 v8, v5, 5, v8")
    A("v_bfe_u32 v5, v0, 2, 2"); A(f"v_lshl_add_u32 v{LB}, v5, 8, v8")
    A("v_bfe_u32 v5, v0, 1, 1"); A(f"v_lshl_add_u32 v{LB}, v5, 6, v{LB}"); A(f"v_lshlrev_b32 v{LD_}, 10, v5")
    A("v_and_b32 v5, 1, v0"); A(f"v_lshl_add_u32 v{LB}, v5, 4, v{LB}")
    A("s_mov_b32 s14, 0xf0000"); A("s_mov_b32 s15, 0x20000")
    A("s_waitcnt lgkmcnt(0)")
    A("s_add_u32 s12, s4, s36"); A("s_addc_u32 s13, s5, 0")
    for p in (6, 8, 10):
        A(f"s_add_u32 s{p}, s{p}, s36"); A(f"s_addc_u32 s{p+1}, s{p+1}, 0")
    def tile_off(u):
        A(f"s_bfe_u32 s39, s{u}, 0x30003"); A("s_lshl_b32 s39, s39, 17")
        A(f"s_and_b32 s38, s{u}, 7"); A("s_lshl_b32 s38, s38, 13"); A("s_add_u32 s39, s39, s38")
    def load(r0, half):
        if half:
            A(f"v_add_u32 v2, s39, v{LB}"); A("v_add_u32 v3, 1024, v2")
            A("v_add_u32 v2, v2, v1"); A("v_sub_u32 v3, v3, v1")
            A("v_add_u32 v4, 0x1000, v2"); A("v_add_u32 v5, 0x1000, v3")
            for e in range(8):
                A(f"buffer_load_dwordx4 v[{r0+e*4}:{r0+e*4+3}], v{2 + (e&1) + 2*(e>>2)}, s[12:15], 0 offen offset:{(e&2)*1024} nt")
        else:
            A(f"v_add_u32 v2, s39, v{LB}"); A("v_add_u32 v3, 0x1000, v2")
            for e in range(8):
                A(f"buffer_load_dwordx4 v[{r0+e*4}:{r0+e*4+3}], v{2 + (e>>2)}, s[12:15], 0 offen offset:{(e&3)*1024} nt")
    def woload():
        for e in range(8):
            A(f"buffer_load_dwordx4 v[{WR+e*4}:{WR+e*4+3}], v{WOF}, s[24:27], s{62 + (e>>2)} offen offset:{(e&3)*1024} nt")
    def s_addr(j):
        A(f"s_and_b32 s38, s{U[j]}, 63"); A("s_lshl_b32 s38, s38, 9")
        A(f"s_lshr_b32 s39, s{U[j]}, 7"); A("s_lshl_b32 s39, s39, 15"); A("s_add_u32 s38, s38, s39")
        A(f"v_add_u32 v7, s38, v{SA}")
    def xgroup(reg, op, dst):
        A(f"v_mov_b32 v{T1}, v{reg}"); nop(2)
        A(f"v_permlane32_swap_b32 v{reg}, v{T1}"); A(f"{op} v{reg}, v{reg}, v{T1}")
        A(f"v_mov_b32 v{T1}, v{reg}"); nop(2)
        A(f"v_permlane16_swap_b32 v{reg}, v{T1}"); A(f"{op} v{dst}, v{reg}, v{T1}")
    def kproc(r0, flagbit, tag):
        for e in range(8):
            A(f"v_mfma_f32_16x16x32_bf16 v[{O+e*4}:{O+e*4+3}], v[{r0+e*4}:{r0+e*4+3}], v[{Q}:{Q+3}], 0")
        nop(1)
        for e in range(8):
            A(f"v_cndmask_b32 v{S+e}, v{O+e*4}, v{O+e*4+1}, s[94:95]"); A(f"v_cndmask_b32 v{T+e}, v{O+e*4+2}, v{O+e*4+3}, s[94:95]")
        if flagbit is not None:
            A(f"s_bitcmp1_b32 s56, {flagbit}"); A(f"s_cbranch_scc1 L_kx{tag}")
        for e in range(8): A(f"v_cndmask_b32 v{S+e}, v{S+e}, v{T+e}, s[96:97]")
        if flagbit is not None:
            A(f"s_branch L_ky{tag}")
            A(f"L_kx{tag}:")
            for e in range(8): A(f"v_cndmask_b32 v{S+e}, v{S+e}, v{T+(e^1)}, s[96:97]")
            A(f"L_ky{tag}:")
        for k in (4, 8):
            for e in range(8): A(f"v_add_f32_dpp v{S+e}, v{S+e}, v{S+e} {ROR(k)}")
        A("s_mov_b64 exec, s[18:19]")
        A(f"ds_write_b128 v7, v[{S}:{S+3}]"); A(f"ds_write_b128 v7, v[{S+4}:{S+7}] offset:16")
        A("s_mov_b64 exec, -1")
        A(f"v_max3_f32 v{M_}, v{M_}, v{S}, v{S+1}"); A(f"v_max3_f32 v{T0}, v{S+2}, v{S+3}, v{S+4}")
        A(f"v_max3_f32 v{M_}, v{M_}, v{S+5}, v{S+6}"); A(f"v_max3_f32 v{M_}, v{M_}, v{T0}, v{S+7}")
        A(f"v_mul_f32 v{T0}, s42, v{M_}"); A(f"v_sub_f32 v{T1}, v{MC}, v{T0}"); A(f"v_mov_b32 v{MC}, v{T0}"); A(f"v_exp_f32 v{T1}, v{T1}")
        for i in range(8): A(f"v_fma_f32 v{T+i}, v{S+i}, s42, -v{MC}")
        for i in range(8): A(f"v_exp_f32 v{T+i}, v{T+i}")
        A(f"v_fma_f32 v{LS}, v{LS}, v{T1}, v{T}")
        A(f"v_add_f32 v{T+1}, v{T+1}, v{T+2}"); A(f"v_add_f32 v{T+3}, v{T+3}, v{T+4}"); A(f"v_add_f32 v{T+5}, v{T+5}, v{T+6}")
        A(f"v_add_f32 v{LS}, v{LS}, v{T+7}"); A(f"v_add_f32 v{T+1}, v{T+1}, v{T+3}"); A(f"v_add_f32 v{LS}, v{LS}, v{T+5}"); A(f"v_add_f32 v{LS}, v{LS}, v{T+1}")
    seq = [("r", 0)] + [("s", j) for j in range(4)]
    def issue(n):
        kind, k = seq[n]
        u = U[k] if kind == "s" else 3
        A(f"s_add_u32 s{u}, s33, {4*n}")
        tile_off(u)
        if n: A(f"s_waitcnt vmcnt({N0})")
        if kind == "r": load(WR, False)
        else: load(RG[k], k % 2 == 0)
    A(f"v_mov_b32 v1, v{LD_}")
    C("the helper's weight loads go first")
    A("s_barrier")
    issue(0)
    srd(24, 46, 47, 4 << 20)
    A(f"s_mov_b32 s42, {CSC:#x}")
    A(f"v_mov_b32 v{M_}, {NEG:#x}"); A(f"v_mov_b32 v{MC}, {NEGC:#x}"); A(f"v_mov_b32 v{LS}, 0")
    A(f"v_mov_b32 v{ZERO}, 0"); A(f"v_mov_b32 v{ONE}, 1"); A(f"v_mov_b32 v{TK}, 0"); A(f"v_mov_b32 v{FU}, 0")
    A(f"v_lshlrev_b32 v{VB}, 4, v0"); A(f"v_mov_b32 v{LB2}, v{VB}")
    A("v_and_b32 v10, 3, v0"); A("v_lshrrev_b32 v9, 4, v0")
    A(f"v_lshl_add_u32 v{QAD}, v10, 8, v8")
    A("v_bfe_u32 v11, v0, 3, 1"); A(f"v_lshl_add_u32 v{QAD}, v11, 6, v{QAD}"); A("v_cmp_eq_u32 s[96:97], 1, v11")
    A("v_bfe_u32 v11, v0, 2, 1"); A(f"v_lshl_add_u32 v{QAD}, v11, 4, v{QAD}"); A("v_cmp_eq_u32 s[94:95], 1, v11"); A(f"v_lshlrev_b32 v{LD2}, 10, v11")
    A(f"v_lshlrev_b32 v{SA}, 5, v10"); A(f"v_lshl_add_u32 v{SA}, v9, 7, v{SA}"); A(f"v_add_u32 v{SA}, {L_S}, v{SA}")
    A(f"v_mul_u32_u24 v{FLA}, {HS}, v10"); A(f"v_lshl_add_u32 v{FLA}, v9, 7, v{FLA}"); A("v_bfe_u32 v11, v0, 2, 2"); A(f"v_lshl_add_u32 v{FLA}, v11, 3, v{FLA}")
    A(f"s_mul_i32 s36, s33, {WSZ}"); A(f"v_add_u32 v{FLA}, s36, v{FLA}")
    for u in range(4):
        A(f"v_cmp_eq_u32 vcc, {u}, v11"); nop(2); A(f"v_cndmask_b32 v{MK+u}, 0, -1, vcc")
    A("v_and_b32 v10, 12, v0"); A("v_cmp_eq_u32 s[18:19], 0, v10")
    A(f"v_mov_b32 v{SLS}, s40"); A(f"v_mov_b32 v{SHS}, s41"); A("v_mov_b32 v10, 0x01000504"); A("v_mov_b32 v11, 0x03020706")
    A(f"v_cndmask_b32 v{SLS}, v{SLS}, v10, s[94:95]"); A(f"v_cndmask_b32 v{SHS}, v{SHS}, v11, s[94:95]")
    A(f"v_lshlrev_b32 v{WOF}, 13, v9"); A("v_and_b32 v9, 15, v0"); A(f"v_lshl_add_u32 v{WOF}, v9, 4, v{WOF}")
    C("addresses of the final sum of the four waves: wave = head, lane (block = l>>5, i = l&31) holds dims 4i..4i+3")
    A("v_lshrrev_b32 v10, 5, v0"); A("v_and_b32 v11, 31, v0")
    A(f"v_mul_u32_u24 v{CRA}, {4*WSZ}, v10"); A(f"v_lshl_add_u32 v{CRA}, v11, 4, v{CRA}"); A(f"s_mul_i32 s36, s33, {HS}"); A(f"v_add_u32 v{CRA}, s36, v{CRA}")
    A("s_lshl_b32 s36, s33, 2"); A(f"v_lshl_add_u32 v{CWA}, v10, 4, s36")
    A(f"s_mov_b32 s36, {BSTR:#x}"); A(f"v_mul_lo_u32 v{PBA}, v10, s36"); A(f"v_lshl_add_u32 v{PBA}, v11, 4, v{PBA}")
    if LOC:
        A("s_lshr_b32 s29, s2, 5"); A("s_bfe_u32 s58, s2, 0x20003"); A("s_bfe_u32 s59, s2, 0x10002"); A("s_lshl_b32 s59, s59, 1"); A("s_and_b32 s37, s2, 1"); A("s_add_u32 s59, s59, s37")
    else:
        A("s_lshr_b32 s58, s30, 2"); A("s_and_b32 s59, s30, 3")
    A("s_lshl_b32 s62, s29, 19"); A("s_lshl_b32 s37, s58, 17"); A("s_add_u32 s62, s62, s37")
    A("s_lshl_b32 s37, s33, 15"); A("s_add_u32 s62, s62, s37")
    A("s_lshl_b32 s37, s59, 8"); A("s_add_u32 s62, s62, s37"); A("s_add_u32 s63, s62, 4096")
    A(f"s_mul_i32 s39, s33, {HPS}"); A("s_add_u32 s32, s32, s39")
    A("s_lshl_b32 s57, s28, 3"); A("s_add_u32 s57, s57, s29"); A(f"s_mul_i32 s57, s57, {32*PSTR}"); A(f"s_mul_i32 s39, s58, {HPS}"); A("s_add_u32 s57, s57, s39"); A(f"s_add_u32 s57, s57, {WS_PO:#x}")
    A("s_mov_b32 s60, 0"); A("s_mov_b32 s50, 0"); A("s_mov_b32 s51, 0"); A("s_mov_b32 s56, 5")
    if diag: A("s_mov_b32 s43, 0")
    assert N0 <= 8
    for n in range(1, len(seq)): issue(n)
    def qwait(lbl, blk):
        A(f"{lbl}:")
        A(f"ds_read_b32 v9, v{ZERO} offset:{L_QF + 4*blk}")
        A("s_waitcnt lgkmcnt(0)")
        A("v_readfirstlane_b32 s37, v9")
        A("s_cmp_lg_u32 s37, 0"); A(f"s_cbranch_scc1 {lbl}ok")
        A("s_sleep 1")
        spin(lbl)
        A(f"{lbl}ok:")
        A(f"ds_read_b128 v[{Q}:{Q+3}], v{QAD} offset:{L_Q + blk*1024}")
    qwait("L_qa", 0)
    A(f"ds_read_b32 v{TG}, v{ZERO} offset:{L_TAG}")
    stamp(2)
    C("extra start-up batch (older than the ring loads, landed by now)")
    A("s_lshl_b32 s38, s33, 9"); A(f"v_add_u32 v7, s38, v{SA}")
    A("s_waitcnt lgkmcnt(0)")
    kproc(WR, None, "x")
    A("s_branch L_body0")
    C("phase change of the processing side: s50 -> s65")
    A("L_trans:")
    A("s_bitcmp1_b32 s50, 0"); A("s_cbranch_scc1 L_tr_v")
    xgroup(M_, "v_max_f32", M_)
    A(f"v_mul_f32 v{T0}, s42, v{M_}"); A(f"v_sub_f32 v{T0}, v{MC}, v{T0}"); A(f"v_min_f32 v{T0}, 0, v{T0}"); A(f"v_exp_f32 v{T0}, v{T0}"); nop(1)
    A(f"v_mul_f32 v{LS}, v{LS}, v{T0}")
    xgroup(LS, "v_add_f32", LS)
    A("s_lshl_b32 s36, s50, 5"); A("v_and_b32 v9, 3, v0"); A("v_lshl_add_u32 v9, v9, 2, s36")
    A("s_lshl_b32 s37, s33, 4"); A("v_add_u32 v10, s37, v9")
    A(f"ds_write_b32 v10, v{M_} offset:{L_MX}"); A(f"ds_write_b32 v10, v{LS} offset:{L_LA}")
    A("s_lshl_b32 s36, s50, 1"); A("v_mov_b32 v10, s36")
    A("s_mov_b64 exec, 1")
    A(f"ds_add_u32 v10, v{ONE} offset:{L_CNT}")
    A("s_mov_b64 exec, -1")
    for i in range(8): A(f"v_mov_b32 v{O+i}, 0")
    A("L_tr_w:")
    A(f"ds_read_b32 v11, v10 offset:{L_CNT}")
    A("s_waitcnt lgkmcnt(0)")
    A("v_readfirstlane_b32 s37, v11")
    A("s_cmp_ge_u32 s37, 4"); A("s_cbranch_scc1 L_tr_k2")
    spin("L_tr_w")
    A("L_tr_k2:")
    A(f"v_add_u32 v9, {L_MX}, v9")
    A("ds_read2_b32 v[12:13], v9 offset0:0 offset1:4"); A("ds_read2_b32 v[14:15], v9 offset0:8 offset1:12")
    A("s_waitcnt lgkmcnt(0)")
    A("v_max3_f32 v12, v12, v13, v14"); A("v_max_f32 v12, v12, v15")
    A(f"v_mul_f32 v{MC}, s42, v12")
    A("s_branch L_tr_n")
    A("L_tr_v:")
    A("s_lshr_b32 s36, s50, 1"); A(f"s_mul_i32 s37, s36, {4*WSZ}"); A(f"s_add_u32 s37, s37, {L_OA}"); A(f"v_add_u32 v9, s37, v{FLA}")
    for r in range(4): A(f"ds_write2_b32 v9, v{O+r}, v{O+4+r} offset0:{r*8} offset1:{r*8+1}")
    A("s_cmp_eq_u32 s50, 3"); A("s_cbranch_scc1 L_tr_n")
    A(f"v_mov_b32 v{M_}, {NEG:#x}"); A(f"v_mov_b32 v{MC}, {NEGC:#x}"); A(f"v_mov_b32 v{LS}, 0")
    qwait("L_qb", 1)
    A("s_waitcnt lgkmcnt(0)")
    A("L_tr_n:")
    A("s_add_u32 s50, s50, 1"); A("s_cmp_lt_u32 s50, s65"); A("s_cbranch_scc1 L_trans")
    A("s_setpc_b64 s[16:17]")
    for j in range(4):
        A(f"L_tcall{j}:")
        A("s_call_b64 s[16:17], L_trans")
        A(f"s_branch L_tok{j}")
        A(f"L_ldph{j}:")
        A("s_mov_b64 s[12:13], s[6:7]"); A("s_mov_b64 s[6:7], s[8:9]"); A("s_mov_b64 s[8:9], s[10:11]")
        A(f"v_swap_b32 v{LB}, v{LB2}"); A(f"v_swap_b32 v{LD_}, v{LD2}")
        A("s_add_u32 s51, s51, 1"); A("s_cmp_lt_u32 s51, s36"); A(f"s_cbranch_scc1 L_ldph{j}")
        A(f"s_branch L_ldok{j}")
        A(f"L_ewk{j}:"); A("s_waitcnt vmcnt(0)"); A(f"s_branch L_kgo{j}")
        A(f"L_ewv{j}:")
        A("s_waitcnt vmcnt(16)"); A("s_cmp_eq_u32 s60, 1"); A(f"s_cbranch_scc1 L_vgo{j}")
        A("s_waitcnt vmcnt(8)"); A("s_cmp_eq_u32 s60, 2"); A(f"s_cbranch_scc1 L_vgo{j}")
        A("s_waitcnt vmcnt(0)")
        A(f"s_branch L_vgo{j}")
        A(f"L_endstep{j}:")
        A("s_add_u32 s60, s60, 1"); A("s_cmp_eq_u32 s60, 4"); A("s_cbranch_scc1 L_exit")
        A(f"s_branch L_body{(j+1)%4}")
        A(f"L_k{j}:")
        A("s_cmp_lg_u32 s60, 0"); A(f"s_cbranch_scc1 L_ewk{j}")
        A("s_waitcnt vmcnt(24)")
        A(f"L_kgo{j}:")
        kproc(RG[j], j if j % 2 == 0 else None, j)
        A(f"s_branch L_refill{j}")
    for j in range(4):
        def ticket():
            A("s_mov_b64 exec, 1")
            A(f"ds_add_rtn_u32 v{TK}, v{ZERO}, v{ONE} offset:{L_TK}")
            A(f"ds_read_b32 v{FU}, v{ZERO} offset:{L_FU}")
            A("s_mov_b64 exec, -1")
        A(f"L_body{j}:")
        if diag: A("s_add_u32 s43, s43, 1")
        A(f"s_lshr_b32 s65, s{U[j]}, 6"); A("s_cmp_lg_u32 s65, s50"); A(f"s_cbranch_scc1 L_tcall{j}")
        A(f"L_tok{j}:")
        s_addr(j)
        A("s_bitcmp0_b32 s50, 0"); A(f"s_cbranch_scc1 L_k{j}")
        A(f"ds_read_b128 v[{S}:{S+3}], v7"); A(f"ds_read_b128 v[{S+4}:{S+7}], v7 offset:16")
        if j % 2 == 0:
            A(f"s_bitcmp1_b32 s56, {j}"); A("s_cselect_b64 vcc, -1, 0")
            A(f"v_mov_b32 v{SELL}, s40"); A(f"v_mov_b32 v{SELH}, s41")
            A(f"v_cndmask_b32 v{SELL}, v{SELL}, v{SLS}, vcc"); A(f"v_cndmask_b32 v{SELH}, v{SELH}, v{SHS}, vcc")
            sl, sh = f"v{SELL}", f"v{SELH}"
        else:
            sl, sh = "s40", "s41"
        A("s_waitcnt lgkmcnt(0)")
        for i in range(8): A(f"v_fma_f32 v{S+i}, v{S+i}, s42, -v{MC}")
        for i in range(8): A(f"v_exp_f32 v{S+i}, v{S+i}")
        for p in range(4): A(f"v_cvt_pk_bf16_f32 v{S+p}, v{S+2*p}, v{S+2*p+1}")
        for u in range(4):
            for p in range(4): A(f"v_and_b32 v{PM+u*4+p}, v{S+p}, v{MK+u}")
        A("s_cmp_lg_u32 s60, 0"); A(f"s_cbranch_scc1 L_ewv{j}")
        A("s_waitcnt vmcnt(24)")
        A(f"L_vgo{j}:")
        src = RG[j]
        for w in range(4):
            for p in range(4):
                A(f"v_perm_b32 v{T+p}, v{src+(2*p+1)*4+w}, v{src+(2*p)*4+w}, {sl}")
            for p in range(4):
                A(f"v_perm_b32 v{T+4+p}, v{src+(2*p+1)*4+w}, v{src+(2*p)*4+w}, {sh}")
            a0 = O; a1 = O + 4
            A(f"v_mfma_f32_16x16x32_bf16 v[{a0}:{a0+3}], v[{T}:{T+3}], v[{PM+w*4}:{PM+w*4+3}], v[{a0}:{a0+3}]")
            nop(1)
            A(f"v_mfma_f32_16x16x32_bf16 v[{a1}:{a1+3}], v[{T+4}:{T+7}], v[{PM+w*4}:{PM+w*4+3}], v[{a1}:{a1+3}]")
        A(f"L_refill{j}:")
        A("s_cmp_lg_u32 s60, 0"); A(f"s_cbranch_scc1 L_endstep{j}")
        if N2 < 24: A(f"s_waitcnt vmcnt({N2})")
        ticket()
        A("s_waitcnt lgkmcnt(0)")
        A(f"v_readfirstlane_b32 s{U[j]}, v{TK}"); A(f"v_readfirstlane_b32 s3, v{FU}")
        A(f"s_cmp_ge_u32 s{U[j]}, 256"); A(f"s_cbranch_scc1 L_endstep{j}")
        A(f"s_lshr_b32 s36, s{U[j]}, 6"); A("s_cmp_lg_u32 s36, s51"); A(f"s_cbranch_scc1 L_ldph{j}")
        A(f"L_ldok{j}:")
        tile_off(U[j])
        if j % 2 == 0:
            A(f"s_cmp_ge_u32 s{U[j]}, s3"); A("s_cselect_b32 s38, -1, 0")
            A(f"s_bitset0_b32 s56, {j}"); A(f"s_and_b32 s37, s38, {1 << j}"); A("s_or_b32 s56, s56, s37")
            A(f"v_and_b32 v1, s38, v{LD_}")
        load(RG[j], j % 2 == 0)
    A("s_branch L_body0")
    A("L_exit:")
    stamp(3)
    if diag: A("s_waitcnt lgkmcnt(0)")
    A("s_mov_b32 s65, 4")
    A("s_call_b64 s[16:17], L_trans")
    woload()
    for i in range(4): A(f"s_mov_b32 s{94+i}, {0x07060500 + i:#x}")
    A("s_waitcnt lgkmcnt(0)")
    A("s_barrier")
    stamp(4)
    for w in range(4): A(f"ds_read_b128 v[{24+w*4}:{27+w*4}], v{CRA} offset:{L_OA + w*WSZ}")
    A(f"ds_read_b32 v40, v{CWA} offset:{L_W}")
    A(f"ds_read_b32 v41, v{ZERO} offset:{L_FU+4}")
    A("s_waitcnt lgkmcnt(0)")
    for i in range(4):
        A(f"v_add_f32 v{24+i}, v{24+i}, v{28+i}"); A(f"v_add_f32 v{32+i}, v{32+i}, v{36+i}")
    for i in range(4): A(f"v_add_f32 v{48+i}, v{24+i}, v{32+i}")
    for i in range(4): A(f"v_mul_f32 v{48+i}, v{48+i}, v40")
    C("the low byte of every value carries one byte of the tag")
    for i in range(4): A(f"v_perm_b32 v{48+i}, v{48+i}, v{TG}, s{94+i}")
    A(f"buffer_store_dwordx4 v[48:51], v{PBA}, s[20:23], s32 offen sc1")
    stamp(5)
    LD = 64; LM = 80; WT = 96; DD = 128
    OWA, ORA, RDA, GRA = 56, 57, 58, 59
    C("first hand-off: wave w gathers dims 32w..32w+31 of its head; lane (p = l&7, u = l>>3): slot (b = u>>1, split = (u&1) + 2i)")
    A("v_lshrrev_b32 v8, 4, v0"); A(f"v_mul_u32_u24 v9, {8*PSTR}, v8")
    A("v_bfe_u32 v10, v0, 3, 1"); A(f"v_mul_u32_u24 v10, {PSTR}, v10"); A("v_add_u32 v9, v9, v10")
    A("v_and_b32 v11, 7, v0"); A("s_lshl_b32 s36, s33, 7"); A("v_lshl_add_u32 v10, v11, 4, v9"); A("v_add_u32 v10, s36, v10")
    for i in range(4): A(f"s_add_u32 s{52+i}, s57, {2*i*PSTR}")
    A("s_lshl_b32 s36, s33, 8"); A(f"s_add_u32 s36, s36, {L_OB}")
    A(f"v_lshlrev_b32 v{OWA}, 6, v8"); A(f"v_lshl_add_u32 v{OWA}, v11, 3, v{OWA}"); A(f"v_add_u32 v{OWA}, s36, v{OWA}")
    A("v_and_b32 v12, 3, v0"); A(f"v_lshlrev_b32 v{ORA}, 6, v12"); A(f"v_lshl_add_u32 v{ORA}, v8, 4, v{ORA}"); A(f"v_add_u32 v{ORA}, s36, v{ORA}")
    A(f"s_mul_i32 s36, s33, {HS}"); A(f"v_lshl_add_u32 v{RDA}, v0, 3, s36"); A(f"v_add_u32 v{FLA}, {L_R2}, v{FLA}")
    A("v_lshrrev_b32 v13, 3, v0"); A(f"v_lshlrev_b32 v{GRA}, 12, v13"); A(f"v_lshl_add_u32 v{GRA}, v11, 4, v{GRA}")
    A("s_lshl_b32 s61, s28, 2"); A("s_add_u32 s61, s61, s59"); A("s_lshl_b32 s61, s61, 17"); A(f"s_add_u32 s61, s61, {WS_OP:#x}")
    A("s_lshl_b32 s63, s29, 2"); A("s_add_u32 s63, s63, s58")
    A("s_lshl_b32 s36, s33, 3"); A("s_add_u32 s36, s36, s63"); A("v_add_u32 v13, s36, v13"); A("v_and_b32 v13, 31, v13")
    A(f"v_lshl_add_u32 v{GRA}, v13, 7, v{GRA}")
    A("s_lshl_b32 s37, s33, 15"); A("s_add_u32 s62, s61, s37")
    A("s_lshl_b32 s36, s63, 12"); A("s_add_u32 s61, s61, s36"); A("s_lshl_b32 s37, s33, 10"); A("s_add_u32 s61, s61, s37")
    srd(12, 48, 49, 8192)
    A("s_lshr_b32 s3, s63, 3"); A("s_lshl_b32 s3, s3, 11"); A("s_lshl_b32 s37, s28, 10"); A("s_add_u32 s3, s3, s37")
    A("s_lshl_b32 s37, s59, 8"); A("s_add_u32 s3, s3, s37"); A("s_and_b32 s37, s63, 7"); A("s_lshl_b32 s37, s37, 5"); A("s_add_u32 s3, s3, s37")
    A("v_lshlrev_b32 v14, 3, v11"); A("s_lshl_b32 s37, s33, 6"); A("v_add_u32 v15, s37, v14")
    A("v_readfirstlane_b32 s50, v41")
    A("s_mov_b32 s56, 0x0c0c0400"); A("s_mov_b32 s60, 0x04000c0c")
    for i in range(4): A(f"s_mov_b64 s[{94+2*i}:{95+2*i}], -1")
    if WARM:
        A("s_cmp_eq_u32 s50, 0"); A("s_cbranch_scc1 L_nowarm")
        A(f"buffer_load_dwordx4 v[32:35], v{VB}, s[20:23], s61 offen sc1")
        A("s_waitcnt vmcnt(2)"); A("s_branch L_warmed")
        A("L_nowarm:")
    A("s_waitcnt vmcnt(1)")
    A("L_warmed:")
    transpose(WR, WT)
    C("a line read before it is written stays stale in L2 for a while: start reading once the own partials have arrived")
    A("s_waitcnt vmcnt(0)")
    A("L_p1:")
    for i in range(4):
        A(f"s_mov_b64 exec, s[{94+2*i}:{95+2*i}]")
        A(f"s_cbranch_execz L_p1s{i}")
        A(f"buffer_load_dwordx4 v[{LD+i*4}:{LD+i*4+3}], v10, s[20:23], s{52+i} offen sc1")
        A(f"L_p1s{i}:")
    A("s_mov_b64 exec, -1")
    A("s_waitcnt vmcnt(0)")
    for i in range(4):
        A(f"v_perm_b32 v{16+i}, v{LD+i*4+1}, v{LD+i*4}, s56"); A(f"v_perm_b32 v{20+i}, v{LD+i*4+3}, v{LD+i*4+2}, s60")
    for i in range(4): A(f"v_or_b32 v{16+i}, v{16+i}, v{20+i}")
    for i in range(4): A(f"v_cmp_ne_u32 s[{94+2*i}:{95+2*i}], v{TG}, v{16+i}")
    for k in range(4):
        A(f"v_add_f32 v{24+k}, v{LD+k}, v{LD+4+k}"); A(f"v_add_f32 v{28+k}, v{LD+8+k}, v{LD+12+k}")
    for k in range(4): A(f"v_add_f32 v{24+k}, v{24+k}, v{28+k}")
    A("s_or_b64 s[36:37], s[94:95], s[96:97]"); A("s_or_b64 s[38:39], s[98:99], s[100:101]"); A("s_or_b64 s[38:39], s[38:39], s[36:37]")
    A("s_cbranch_scc0 L_got1")
    spin("L_p1")
    A("L_got1:")
    stamp(6)
    for i in range(4): A(f"v_add_f32_dpp v{24+i}, v{24+i}, v{24+i} {ROR8}")
    A("v_cvt_pk_bf16_f32 v32, v24, v25"); A("v_cvt_pk_bf16_f32 v33, v26, v27")
    A(f"ds_write_b64 v{OWA}, v[32:33]")
    A(f"ds_read_b128 v[36:39], v{ORA}")
    A("s_waitcnt lgkmcnt(0)")
    for u in range(4):
        for p in range(4): A(f"v_and_b32 v{40+u*4+p}, v{36+p}, v{MK+u}")
        if u:
            for a_ in range(2):
                jn = 2*(u-1) + a_; c = "0" if u == 1 else f"v[{DD+a_*4}:{DD+a_*4+3}]"
                A(f"v_mfma_f32_16x16x32_bf16 v[{DD+a_*4}:{DD+a_*4+3}], v[{WT+jn*4}:{WT+jn*4+3}], v[{40+(u-1)*4}:{43+(u-1)*4}], {c}")
    for a_ in range(2):
        A(f"v_mfma_f32_16x16x32_bf16 v[{DD+a_*4}:{DD+a_*4+3}], v[{WT+(6+a_)*4}:{WT+(6+a_)*4+3}], v[52:55], v[{DD+a_*4}:{DD+a_*4+3}]")
    nop(8)
    for r in range(4): A(f"ds_write2_b32 v{FLA}, v{DD+r}, v{DD+4+r} offset0:{r*8} offset1:{r*8+1}")
    A("s_waitcnt lgkmcnt(0)")
    A("s_barrier")
    stamp(7)
    for w in range(4): A(f"ds_read_b64 v[{16+w*2}:{17+w*2}], v{RDA} offset:{L_R2 + w*WSZ}")
    A(f"v_mov_b32 v25, v{TG}"); A(f"v_mov_b32 v27, v{TG}")
    A("s_waitcnt lgkmcnt(0)")
    A("v_add_f32 v16, v16, v18"); A("v_add_f32 v17, v17, v19"); A("v_add_f32 v20, v20, v22"); A("v_add_f32 v21, v21, v23")
    A("v_add_f32 v24, v16, v20"); A("v_add_f32 v26, v17, v21")
    C("second hand-off: tagged partial outputs; every workgroup finishes 16 output elements")
    A("s_mov_b64 vcc, -1"); A("v_lshlrev_b32 v8, 2, v0")
    A("s_cmp_lg_u32 s50, 0"); A("s_cbranch_scc1 L_opl")
    A(f"buffer_store_dwordx4 v[24:27], v{GRA}, s[20:23], s62 offen sc1")
    A("s_waitcnt vmcnt(0)")
    A("s_branch L_poll2")
    A("L_opl:")
    A(f"buffer_store_dwordx4 v[24:27], v{GRA}, s[20:23], s62 offen")
    stamp(10)
    A("L_poll2:")
    A("s_mov_b64 exec, vcc")
    A(f"buffer_load_dwordx4 v[32:35], v{VB}, s[20:23], s61 offen sc1")
    A("s_mov_b64 exec, -1")
    A("s_waitcnt vmcnt(0)")
    A(f"v_xor_b32 v6, v33, v{TG}"); A(f"v_xor_b32 v7, v35, v{TG}"); A("v_or_b32 v6, v6, v7")
    A("v_cmp_ne_u32 vcc, 0, v6")
    A("s_cbranch_vccz L_got2")
    spin("L_poll2")
    A("L_got2:")
    A(f"v_add_f32_dpp v32, v32, v32 {ROR8}"); A(f"v_add_f32_dpp v34, v34, v34 {ROR8}")
    A("v_mov_b32 v33, v32"); A("v_mov_b32 v35, v34"); nop(1)
    A("v_permlane32_swap_b32 v32, v33"); A("v_permlane32_swap_b32 v34, v35")
    A("v_add_f32 v32, v32, v33"); A("v_add_f32 v34, v34, v35")
    A("v_mov_b32 v33, v32"); A("v_mov_b32 v35, v34"); nop(1)
    A("v_permlane16_swap_b32 v32, v33"); A("v_permlane16_swap_b32 v34, v35")
    A("v_add_f32 v32, v32, v33"); A("v_add_f32 v33, v34, v35")
    A("s_mov_b64 exec, 0xff")
    A(f"ds_write_b64 v15, v[32:33] offset:{L_Q}")
    A("s_waitcnt lgkmcnt(0)")
    A("s_barrier")
    A("s_cmp_lg_u32 s33, 0"); A("s_cbranch_scc1 L_sdone")
    A(f"ds_read2_b64 v[32:35], v14 offset0:{L_Q//8} offset1:{L_Q//8+8}")
    A(f"ds_read2_b64 v[36:39], v14 offset0:{L_Q//8+16} offset1:{L_Q//8+24}")
    A("s_waitcnt lgkmcnt(0)")
    A("v_add_f32 v32, v32, v34"); A("v_add_f32 v33, v33, v35"); A("v_add_f32 v36, v36, v38"); A("v_add_f32 v37, v37, v39")
    A("v_add_f32 v32, v32, v36"); A("v_add_f32 v33, v33, v37")
    A("v_cvt_pk_bf16_f32 v32, v32, v33")
    A("buffer_store_dword v32, v8, s[12:15], s3 offen")
    A("s_cmp_lg_u32 s2, 0"); A("s_cbranch_scc1 L_sdone")
    C("every workgroup has contributed to this result, so every workgroup has read the old tag")
    A(f"s_mov_b32 s37, {WS_EPOCH:#x}")
    A("s_mov_b64 exec, 1")
    A(f"buffer_store_dword v{TG}, v{ZERO}, s[20:23], s37 offen sc1")
    A("L_sdone:")
    if diag:
        A("s_waitcnt vmcnt(0)")
        stamp(9)
        A("s_cmp_lg_u32 s33, 0"); A("s_cbranch_scc1 L_end2")
        stamps_out(11, 0, "s43")
        A("L_end2:")
    A("s_endpgm")

    A('.section .rodata,"a"'); A(".p2align 6"); A(f".amdhsa_kernel {NAME}_kernel")
    A("  .amdhsa_next_free_vgpr 256"); A("  .amdhsa_next_free_sgpr 102"); A("  .amdhsa_accum_offset 256")
    A("  .amdhsa_group_segment_fixed_size 0"); A("  .amdhsa_kernarg_size 104"); A("  .amdhsa_user_sgpr_count 2")
    A("  .amdhsa_user_sgpr_kernarg_segment_ptr 1"); A("  .amdhsa_system_sgpr_workgroup_id_x 1"); A(".end_amdhsa_kernel")
    return "\n".join(x for x in L if x) + "\n"

HEADER = """
Two GQA decode blocks in one launch, 256 workgroups (one per CU) of 4 streaming waves + 1 helper wave.
Every workgroup owns 2048 keys of one (batch, kv head) in both blocks and streams K_A, V_A, K_B, V_B in that order:
scores go to LDS, the workgroup's true maximum is taken after each K phase, P*V is accumulated with MFMA.
q = x*wq is computed in 256 slices by the helper waves and handed over through d_ws (tagged granules).
The 8 workgroups of a pair exchange maximum and sum during the V phase, so the partials are published already weighted;
they are summed and multiplied by wo in 128x128 tiles, then reduced over heads; both hand-offs go through d_ws.
"""

def emit(V):
    for n, kw in V.items():
        open(n + ".s", "w").write(gen(False, **kw))
        open(n + "_d.s", "w").write(gen(True, **kw))
    print(" ".join(n + ".s" for n in V)); print(" ".join(n + "_d.s" for n in V))
    print(",".join(f'"work/{n}.s","work/{n}_d.s"' for n in V))

if __name__ == "__main__":
    emit({"w29a": {}, "w29b": dict(PW=2), "w29c": dict(PW=1), "w29d": dict(PW=4)})
```

```python
import sys, math, struct
NAME = "concat_heads__gqa_block_cached__gqa_block_cached__decode"
def f2u(x): return struct.unpack("<I", struct.pack("<f", x))[0]
CSC = f2u(math.log2(math.e) / math.sqrt(128.0))

WS_Q = 0
WS_EPOCH = 0x20000
WS_PG = 0x30000; PGS = 1152
WS_DIAG = 0xC0000
WS_OP = 0x100000
WS_PO = 0x200000; PSTR = 2048 + 128; HPS = 512; BSTR = 256 * PSTR
WS_ML = 0x24000
NEG = f2u(-3.0e38); NEGC = f2u(-3.0e38 * math.log2(math.e) / math.sqrt(128.0))
WS_XC = 0x2C000
WS_USED = 0x340000
L_Q = 0; L_TK = 2048; L_TAG = L_TK + 4; L_FU = L_TK + 8; L_QF = L_TK + 16; L_CNT = L_TK + 24
L_W = L_TK + 32; L_MX = L_TK + 64; L_LA = L_MX + 128; L_OB = 2560; L_RED = 3584; L_OA = 6144; HS = 544; WSZ = 4*HS; L_S = L_OA + 8*WSZ; L_XB = L_S + 65536
L_R2 = L_S
SPIN = 1 << 23
KTAG = 0x9E3779B1

def gen(diag=False, N0=2, EV=((64,"b"),(80,"p0"),(112,"g0"),(128,"b"),(150,"x0"),(192,"b"),(205,"p1"),(214,"b"),(222,"g1"),(230,"b"),(242,"b")), TH=5, KAP=36, N2=16, LOC=True, WARM=1):
    L = []
    NX = 1
    L_TOT = L_XB
    def A(s): L.append(s)
    def C(s): L.append("; " + s)
    def nop(n):
        while n > 0:
            k = min(n, 16); A(f"s_nop {k-1}"); n -= k
    def srd(d, lo, hi, nbytes):
        A(f"s_mov_b32 s{d}, s{lo}"); A(f"s_mov_b32 s{d+1}, s{hi}")
        A(f"s_mov_b32 s{d+2}, {nbytes:#x}"); A(f"s_mov_b32 s{d+3}, 0x20000")
    def stamp(i):
        if diag: A(f"s_memrealtime s[{66+2*i}:{67+2*i}]")
    def stamps_out(n, role, extra=None):
        if diag:
            A("s_waitcnt lgkmcnt(0)")
            A("s_mov_b64 exec, 1")
            A("s_lshl_b32 s37, s2, 7"); A(f"s_add_u32 s37, s37, {WS_DIAG + role*64:#x}")
            A("v_mov_b32 v1, 0")
            for i in range(n):
                A(f"v_mov_b32 v2, s{66+2*i}")
                A(f"buffer_store_dword v2, v1, s[20:23], s37 offen offset:{i*4}")
            if extra:
                A(f"v_mov_b32 v2, {extra}")
                A(f"buffer_store_dword v2, v1, s[20:23], s37 offen offset:56")
            A("s_getreg_b32 s38, hwreg(HW_REG_XCC_ID)")
            A("v_mov_b32 v2, s38")
            A(f"buffer_store_dword v2, v1, s[20:23], s37 offen offset:60")
    def spin(label):
        A("s_sub_u32 s64, s64, 1"); A("s_cmp_gt_i32 s64, 0"); A(f"s_cbranch_scc1 {label}")
    def transpose(src, dst):
        for w in range(4):
            for p in range(4):
                A(f"v_perm_b32 v{dst+(2*w)*4+p}, v{src+(2*p+1)*4+w}, v{src+(2*p)*4+w}, s40")
                A(f"v_perm_b32 v{dst+(2*w+1)*4+p}, v{src+(2*p+1)*4+w}, v{src+(2*p)*4+w}, s41")
    ROR = lambda k: f"row_ror:{k} row_mask:0xf bank_mask:0xf"
    ROR8 = ROR(8)

    A(f"; @launch grid=(256,1,1) block=(320,1,1) lds={L_TOT}")
    for line in HEADER.strip().splitlines(): C(line)
    A('.amdgcn_target "amdgcn-amd-amdhsa--gfx950"')
    A(".text")
    A(f".globl {NAME}_kernel"); A(".p2align 8"); A(f".type {NAME}_kernel,@function"); A(f"{NAME}_kernel:")
    A("s_cmp_ge_u32 s2, 256"); A("s_cbranch_scc1 L_end")
    stamp(0)
    C("s28 = block of the weight role, s29 = kv head, s30 = weight slice, s34 = batch, s35 = split, s31 = kvh*4+b, s32 = own slot")
    A("s_bfe_u32 s28, s2, 0x10001")
    A("s_mul_i32 s32, s28, 40")
    A("s_load_dwordx2 s[16:17], s[0:1], s32")
    A("s_add_u32 s32, s32, 24")
    A("s_load_dwordx4 s[44:47], s[0:1], s32")
    A("s_load_dwordx2 s[20:21], s[0:1], 96")
    A("s_load_dwordx4 s[4:7], s[0:1], 8")
    A("s_load_dwordx4 s[8:11], s[0:1], 48")
    A("s_load_dwordx2 s[48:49], s[0:1], 80")
    A("v_lshrrev_b32 v1, 6, v0")
    A("v_and_b32 v0, 63, v0")
    A("v_readfirstlane_b32 s33, v1")
    A("s_lshr_b32 s34, s2, 6")
    A("s_bfe_u32 s29, s2, 0x20004"); A("s_lshl_b32 s29, s29, 1"); A("s_bfe_u32 s36, s2, 0x10002"); A("s_add_u32 s29, s29, s36")
    A("s_bfe_u32 s37, s2, 0x10003")
    A("s_and_b32 s35, s2, 3"); A("s_lshl_b32 s35, s35, 1"); A("s_add_u32 s35, s35, s37")
    A("s_and_b32 s30, s35, 3"); A("s_lshl_b32 s36, s34, 2"); A("s_add_u32 s30, s30, s36")
    A("s_lshl_b32 s31, s29, 2"); A("s_add_u32 s31, s31, s34")
    A("s_lshl_b32 s32, s31, 3"); A("s_add_u32 s32, s32, s35"); A(f"s_mul_i32 s32, s32, {PSTR}"); A(f"s_add_u32 s32, s32, {WS_PO:#x}")
    A("s_mov_b32 s40, 0x05040100"); A("s_mov_b32 s41, 0x07060302")
    A(f"s_mov_b32 s64, {SPIN}")
    A(f"s_mov_b32 s22, {WS_USED:#x}"); A("s_mov_b32 s23, 0x20000")
    A("s_cmp_lg_u32 s33, 0"); A("s_cbranch_scc1 L_stream")

    C("=============== helper wave: q projection slice, q hand-off, load balancing ===============")
    B = [16 + 32*i for i in range(5)]
    X = 176
    A("s_setprio 3")
    A("v_bfe_u32 v1, v0, 2, 2"); A("v_lshlrev_b32 v1, 18, v1")
    A("v_lshrrev_b32 v2, 4, v0"); A("v_lshl_add_u32 v1, v2, 16, v1")
    A("v_and_b32 v2, 3, v0"); A("v_lshl_add_u32 v1, v2, 4, v1")
    A("v_lshlrev_b32 v3, 10, v2")
    A("v_bfe_u32 v2, v0, 2, 2"); A("v_lshl_add_u32 v3, v2, 6, v3")
    A("v_lshrrev_b32 v2, 4, v0"); A("v_lshl_add_u32 v3, v2, 4, v3")
    A("s_lshl_b32 s56, s29, 10"); A("s_lshl_b32 s37, s30, 6"); A("s_add_u32 s56, s56, s37")
    A("v_mov_b32 v14, 0"); A("v_mov_b32 v8, 0"); A("v_mov_b32 v9, 0"); A("v_mov_b32 v10, 0"); A("v_mov_b32 v11, 0")
    A(f"ds_write_b128 v14, v[8:11] offset:{L_QF}")
    A(f"ds_write_b64 v14, v[8:9] offset:{L_FU}")
    for i in range(4): A(f"v_mov_b32 v{192+i}, -1")
    A("v_lshlrev_b32 v2, 4, v0"); A("v_lshlrev_b32 v13, 3, v0"); A("v_mov_b32 v8, 1")
    A(f"s_add_u32 s39, s32, {BSTR:#x}")
    A(f"s_mov_b32 s37, {WS_EPOCH:#x}")
    A("s_lshl_b32 s38, s31, 11"); A("s_mov_b32 s54, 0")
    A("s_mov_b32 s18, 4096"); A("s_mov_b32 s19, 0x20000"); A("s_mov_b32 s14, 0x400000"); A("s_mov_b32 s15, 0x20000")
    A("s_waitcnt lgkmcnt(0)")
    A("s_mov_b32 s12, s44"); A("s_mov_b32 s13, s45")
    C("hand-off tag of the previous launch: only used to tell this launch's hand-offs from older ones")
    A("buffer_load_dword v15, v14, s[20:23], s37 offen sc1")
    def taginit(n):
        A(f"s_waitcnt vmcnt({n})")
        A(f"v_add_u32 v15, {KTAG:#x}, v15")
        A(f"v_mov_b32 v10, {16 + 4*NX}"); A("v_mov_b32 v11, v15")
        A("v_readfirstlane_b32 s55, v15")
        A(f"ds_write_b64 v14, v[10:11] offset:{L_TK}")
    for rho in range(4):
        A(f"buffer_load_dwordx4 v[{X+rho*4}:{X+rho*4+3}], v3, s[16:19], 0 offen offset:{rho*256}")
    for rho in range(4):
        for e in range(8):
            off = (rho * 128 + e) * 8192
            r = B[rho+1] + e * 4
            if off: A(f"s_add_u32 s37, s56, {off:#x}")
            A(f"buffer_load_dwordx4 v[{r}:{r+3}], v1, s[12:15], s{37 if off else 56} offen nt")
    C("mark the two own partial slots as empty")
    for so in (32, 39):
        A(f"buffer_store_dwordx4 v[192:195], v2, s[20:23], s{so} offen sc1")
        A(f"buffer_store_dwordx4 v[192:195], v2, s[20:23], s{so} offen offset:1024 sc1")
    A("s_barrier")
    taginit(40)
    stamp(1)
    A("v_lshrrev_b32 v4, 4, v0"); A("v_bfe_u32 v5, v0, 2, 2")
    A("v_cmp_eq_u32 s[58:59], v4, v5")
    A("v_lshlrev_b32 v4, 9, v4"); A("v_and_b32 v5, 3, v0"); A("v_lshl_add_u32 v4, v5, 7, v4")
    A("v_lshrrev_b32 v6, 4, v0"); A("v_lshlrev_b32 v6, 7, v6")
    A("v_lshl_add_u32 v6, v5, 5, v6")
    A("v_bfe_u32 v5, v0, 2, 2"); A("v_lshl_add_u32 v6, v5, 2, v6")
    A(f"v_add_u32 v6, {L_RED}, v6"); A("v_add_u32 v7, 1024, v6")
    A("v_lshrrev_b32 v12, 4, v0"); A("v_lshlrev_b32 v12, 11, v12")
    A("v_and_b32 v5, 15, v0"); A("v_lshl_add_u32 v12, v5, 3, v12")
    A("s_lshl_b32 s36, s28, 3"); A("s_add_u32 s36, s36, s29"); A("s_lshl_b32 s36, s36, 13"); A("s_lshl_b32 s37, s30, 7"); A("s_add_u32 s36, s36, s37")
    ACC = B[4]
    for rho in range(4):
        A(f"s_waitcnt vmcnt({28 - rho*8})")
        if rho == 0: stamp(3)
        if rho == 3: stamp(4)
        transpose(B[rho+1], B[rho])
    nop(1)
    for rho in range(4):
        for jn in range(8):
            a = ACC + jn*4; t = B[rho] + jn*4
            c = "0" if rho == 0 else f"v[{a}:{a+3}]"
            A(f"v_mfma_f32_16x16x32_bf16 v[{a}:{a+3}], v[{t}:{t+3}], v[{X+rho*4}:{X+rho*4+3}], {c}")
    A("s_mov_b64 exec, s[58:59]")
    nop(1)
    for jn in range(8):
        A(f"ds_write_b128 v4, v[{ACC+jn*4}:{ACC+jn*4+3}] offset:{L_RED + jn*16}")
    A("s_mov_b64 exec, -1")
    A("ds_read2_b32 v[16:17], v6 offset0:0 offset1:4")
    A("ds_read2_b32 v[18:19], v6 offset0:128 offset1:132")
    A("ds_read2_b32 v[20:21], v7 offset0:0 offset1:4")
    A("ds_read2_b32 v[22:23], v7 offset0:128 offset1:132")
    A("s_waitcnt lgkmcnt(0)")
    A("v_add_f32 v16, v16, v18"); A("v_add_f32 v17, v17, v19"); A("v_add_f32 v20, v20, v22"); A("v_add_f32 v21, v21, v23")
    A("v_add_f32 v16, v16, v20"); A("v_add_f32 v17, v17, v21")
    A("v_cvt_pk_bf16_f32 v10, v16, v17")
    C("the slots are empty before q is published: whoever sees these granules may trust the slots")
    A("s_waitcnt vmcnt(0)")
    A(f"buffer_store_dwordx2 v[10:11], v12, s[20:23], s36 offen offset:{WS_Q} sc1")
    stamp(2)
    A("s_waitcnt vmcnt(0)")
    A("L_pollq:")
    A(f"buffer_load_dwordx4 v[16:19], v2, s[20:23], s38 offen offset:{WS_Q} sc1")
    A(f"buffer_load_dwordx4 v[20:23], v2, s[20:23], s38 offen offset:{WS_Q+1024} sc1")
    A("s_waitcnt vmcnt(0)")
    A("v_xor_b32 v17, s55, v17"); A("v_xor_b32 v19, s55, v19"); A("v_xor_b32 v21, s55, v21"); A("v_xor_b32 v23, s55, v23")
    A("v_or3_b32 v17, v17, v19, v21"); A("v_or_b32 v17, v17, v23")
    A("v_cmp_ne_u32 vcc, 0, v17")
    A("s_cbranch_vccz L_gotq")
    spin("L_pollq")
    A("L_gotq:")
    if LOC: A("s_cmp_ge_u32 s54, 2"); A("s_cbranch_scc1 L_gotr")
    A(f"ds_write2_b32 v13, v16, v18 offset0:{L_Q//4} offset1:{L_Q//4+1}")
    A(f"ds_write2_b32 v13, v20, v22 offset0:{L_Q//4+128} offset1:{L_Q//4+129}")
    A(f"ds_write_b32 v9, v8 offset:{L_QF}")
    A("s_cmp_lg_u32 s54, 0"); A("s_cbranch_scc1 L_gotw")
    stamp(5); stamp(6)
    if diag: A(f"s_sub_u32 s43, {SPIN}, s64")
    A("s_mov_b32 s54, 1"); A("s_add_u32 s38, s38, 0x10000"); A("v_add_u32 v13, 1024, v13"); A("v_mov_b32 v9, 4")
    A("s_branch L_pollq")
    A("L_gotw:")
    if LOC:
        C("the slots read at the end belong to another kv head: see the q granules of its workgroups, which follow their resets")
        A("s_lshr_b32 s38, s2, 5"); A("s_lshl_b32 s38, s38, 13"); A("s_mov_b32 s54, 2"); A("s_branch L_pollq")
        A("L_gotr:")
        A("s_add_u32 s54, s54, 1"); A("s_add_u32 s38, s38, 0x10000"); A("s_cmp_eq_u32 s54, 3"); A("s_cbranch_scc1 L_pollq")
    if diag: A("s_mov_b32 s57, 128")
    C("compute die of this workgroup, for the 32 workgroups that exchange partial outputs at the end")
    A("s_getreg_b32 s53, hwreg(HW_REG_XCC_ID, 0, 4)")
    A("s_and_b32 s52, s2, 7"); A("s_lshl_b32 s52, s52, 10"); A(f"s_add_u32 s52, s52, {WS_XC:#x}")
    A("s_lshr_b32 s36, s2, 3"); A("s_lshl_b32 s36, s36, 5"); A("s_add_u32 s36, s36, s52")
    A("v_mov_b32 v10, s53")
    A("s_mov_b64 exec, 1")
    A("buffer_store_dwordx2 v[10:11], v14, s[20:23], s36 offen sc1")
    A("s_mov_b64 exec, -1")
    A(f"s_mov_b32 s6, {WS_PG:#x}"); A("s_lshr_b32 s7, s2, 2"); A(f"s_mul_i32 s7, s7, {PGS}"); A("s_and_b32 s36, s2, 3"); A("s_lshl_b32 s36, s36, 2"); A("s_add_u32 s7, s7, s36")
    A("s_bfe_u32 s8, s2, 0x30003"); A(f"s_mul_i32 s8, s8, {PGS}")
    A("s_lshl_b32 s4, s31, 9"); A(f"s_add_u32 s4, s4, {WS_ML:#x}"); A("s_lshl_b32 s5, s35, 6"); A("s_add_u32 s5, s5, s4")
    A(f"s_mov_b32 s42, {CSC:#x}")
    A("v_and_b32 v3, 3, v0"); A("v_lshlrev_b32 v3, 2, v3"); A("v_and_b32 v4, 0x1f0, v2")
    assert sum(k == "b" for _, k in EV) <= 8
    for tk, kind in EV:
        A(f"s_movk_i32 s9, {tk}")
        if kind != "b": A(f"s_mov_b32 s11, {int(kind[1])}")
        if diag: A("s_waitcnt lgkmcnt(0)")
        A(f"s_call_b64 s[58:59], L_ev{kind[0]}")
    A("s_branch L_hdone")
    def waittk(tag):
        A("s_sub_u32 s10, s9, 5")
        A(f"L_prog{tag}:")
        A(f"ds_read_b32 v10, v14 offset:{L_TK}")
        A("s_waitcnt lgkmcnt(0)")
        A("v_readfirstlane_b32 s37, v10")
        if diag:
            for k, th in enumerate((64, 128, 192)):
                A(f"s_cmp_ge_u32 s37, {th}"); A(f"s_cbranch_scc1 L_pg{k}{tag}"); stamp(8 + k); A(f"L_pg{k}{tag}:")
        A("s_cmp_ge_u32 s37, s9"); A(f"s_cbranch_scc1 L_progdone{tag}")
        A("s_cmp_ge_u32 s37, s10"); A(f"s_cbranch_scc1 L_progs{tag}")
        A(f"s_sleep {8 if diag else 16}")
        A(f"L_progs{tag}:")
        A("s_sleep 1")
        spin(f"L_prog{tag}")
        A(f"L_progdone{tag}:")
    C("load balancing (speed only): at a few batch counts publish the time and compare it with 32 other workgroups;")
    C("a workgroup that is behind loads full lines only for a while, which gives it a larger share of the bandwidth")
    A("L_evb:")
    waittk("b")
    QD = [12, 16, 24, 28, 32, 44, 48, 96]
    A("s_memrealtime s[60:61]")
    A("s_add_u32 s36, s6, s7"); A("s_add_u32 s37, s6, s8")
    A("s_add_u32 s62, s20, s37"); A("s_addc_u32 s63, s21, 0")
    A("s_waitcnt lgkmcnt(0)")
    A("v_mov_b32 v20, s60")
    A("s_mov_b64 exec, 1")
    A("buffer_store_dword v20, v14, s[20:23], s36 offen sc1")
    A("s_mov_b64 exec, -1")
    for k, q in enumerate(QD): A(f"s_load_dwordx4 s[{q}:{q+3}], s[62:63], {7*k*PGS:#x} glc")
    A(f"s_add_u32 s6, s6, {64*PGS}"); A("s_mov_b32 s36, 0")
    A("s_waitcnt lgkmcnt(0)")
    A(f"ds_read_b32 v10, v14 offset:{L_TK}")
    for q in QD:
        for i in range(4):
            A(f"s_sub_u32 s37, s60, s{q+i}"); A("s_cmpk_lt_u32 s37, 1000"); A("s_cselect_b32 s37, s37, 0"); A("s_add_u32 s36, s36, s37")
    A("s_lshr_b32 s36, s36, 5"); A(f"s_sub_i32 s36, s36, {TH}"); A("s_max_i32 s36, s36, 0"); A(f"s_mul_i32 s36, s36, {KAP}"); A("s_lshr_b32 s36, s36, 8")
    if diag: A("s_add_u32 s57, s57, s36")
    A("s_waitcnt lgkmcnt(0)")
    A("v_add_u32 v10, s36, v10")
    A(f"ds_write_b32 v14, v10 offset:{L_FU}")
    A("s_setpc_b64 s[58:59]")
    C("maximum and sum of this workgroup's keys, published as two tagged granules per head")
    A("L_evp:")
    waittk("p")
    A("s_lshl_b32 s36, s11, 2"); A("v_mov_b32 v5, s36")
    A("L_evp1:")
    A(f"ds_read_b32 v10, v5 offset:{L_CNT}")
    A("s_waitcnt lgkmcnt(0)")
    A("v_readfirstlane_b32 s37, v10")
    A("s_cmp_ge_u32 s37, 4"); A("s_cbranch_scc1 L_evp2")
    A("s_sleep 2")
    spin("L_evp1")
    A("L_evp2:")
    A("s_lshl_b32 s36, s11, 6"); A(f"s_add_u32 s36, s36, {L_MX}"); A("v_add_u32 v5, s36, v3")
    A("ds_read2_b32 v[16:17], v5 offset0:0 offset1:4"); A("ds_read2_b32 v[18:19], v5 offset0:8 offset1:12")
    A("ds_read2_b32 v[20:21], v5 offset0:32 offset1:36"); A("ds_read2_b32 v[22:23], v5 offset0:40 offset1:44")
    A("s_lshl_b32 s36, s11, 14"); A("s_add_u32 s36, s36, s5")
    A("s_waitcnt lgkmcnt(0)")
    A("v_max3_f32 v24, v16, v17, v18"); A("v_max_f32 v24, v24, v19"); A("v_mul_f32 v24, s42, v24")
    for i in range(4): A(f"v_mul_f32 v{16+i}, s42, v{16+i}")
    for i in range(4): A(f"v_sub_f32 v{16+i}, v{16+i}, v24")
    for i in range(4): A(f"v_exp_f32 v{16+i}, v{16+i}")
    A("v_mov_b32 v25, v15"); A("v_mov_b32 v27, v15")
    A("v_mul_f32 v26, v16, v20")
    for i in range(1, 4): A(f"v_fmac_f32 v26, v{16+i}, v{20+i}")
    A("s_mov_b64 exec, 15")
    A("buffer_store_dwordx4 v[24:27], v2, s[20:23], s36 offen sc1")
    A("s_mov_b64 exec, -1")
    A("s_setpc_b64 s[58:59]")
    C("weight of this workgroup's partial: exp2(M - M*) / L* over the 8 workgroups of the pair")
    A("L_evg:")
    waittk("g")
    A("s_lshl_b32 s36, s11, 14"); A("s_add_u32 s36, s36, s4")
    A("L_evg1:")
    A("buffer_load_dwordx4 v[16:19], v4, s[20:23], s36 offen sc1")
    A("s_waitcnt vmcnt(0)")
    A("v_xor_b32 v17, v15, v17"); A("v_xor_b32 v19, v15, v19"); A("v_or_b32 v17, v17, v19")
    A("v_cmp_ne_u32 vcc, 0, v17")
    A("s_cbranch_vccz L_evg2")
    A("s_sleep 8")
    spin("L_evg1")
    A("L_evg2:")
    def allsp(reg, op):
        A(f"{op}_dpp v{reg}, v{reg}, v{reg} {ROR(4)}"); nop(2)
        A(f"{op}_dpp v{reg}, v{reg}, v{reg} {ROR(8)}")
        A(f"v_mov_b32 v21, v{reg}"); nop(2)
        A(f"v_permlane16_swap_b32 v{reg}, v21"); A(f"{op} v{reg}, v{reg}, v21")
    A("v_mov_b32 v20, v16"); nop(2)
    allsp(20, "v_max_f32")
    A("v_sub_f32 v16, v16, v20"); A("v_sub_f32 v17, v24, v20")
    A("v_exp_f32 v16, v16"); A("v_exp_f32 v17, v17"); nop(1)
    A("v_mul_f32 v18, v18, v16"); nop(2)
    allsp(18, "v_add_f32")
    A("v_rcp_f32 v18, v18")
    A("s_lshl_b32 s36, s11, 4"); A("v_add_u32 v5, s36, v3")
    A("v_mul_f32 v17, v17, v18")
    A(f"ds_write_b32 v5, v17 offset:{L_W}")
    A("s_setpc_b64 s[58:59]")
    C("do all 32 share this workgroup's L2?  then a plain store is enough for the last hand-off")
    A("L_evx:")
    waittk("x")
    A("v_and_b32 v5, 31, v0"); A("v_lshlrev_b32 v5, 5, v5")
    A("L_evx1:")
    A("buffer_load_dwordx2 v[16:17], v5, s[20:23], s52 offen sc1")
    A("s_waitcnt vmcnt(0)")
    A("v_cmp_ne_u32 vcc, v15, v17")
    A("s_cbranch_vccz L_evx2")
    A("s_sleep 8")
    spin("L_evx1")
    A("s_setpc_b64 s[58:59]")
    A("L_evx2:")
    A("v_cmp_ne_u32 vcc, s53, v16")
    A("s_cbranch_vccnz L_evx3")
    A(f"ds_write_b32 v14, v8 offset:{L_FU+4}")
    A("L_evx3:")
    A("s_setpc_b64 s[58:59]")
    A("L_hdone:")
    stamp(7)
    if diag: A("s_lshl_b32 s43, s43, 16"); A("s_add_u32 s43, s43, s57")
    stamps_out(11, 1, "s43")
    A("L_end:")
    A("s_endpgm")

    C("=============== streaming waves ===============")
    S = 8; T = 16; O = 24
    M_, MC, LS, T0, TK, FU, TG, ZERO = 56, 57, 58, 59, 60, 61, 62, 63
    RG = [64, 96, 128, 160]; Q = 192; WR = 208
    LB, LD_, LB2, LD2 = 196, 197, 198, 199
    VB, ONE, SELL, SELH, SLS, SHS, SA, QAD, WOF, FLA = 241, 242, 244, 245, 246, 247, 249, 250, 251, 254
    T1 = 6; MK = 204; PM = 32; CRA, CWA, PBA = 200, 201, 202
    U = [52, 53, 54, 55]
    A("L_stream:")
    A("s_sub_u32 s33, s33, 1")
    C("range: MiB number x + 8y of every cache buffer, 64 KiB chunks alternate with the workgroup 8 further on")
    A("s_and_b32 s36, s2, 7"); A("s_lshr_b32 s37, s2, 4"); A("s_lshl_b32 s37, s37, 3"); A("s_add_u32 s36, s36, s37"); A("s_lshl_b32 s36, s36, 20")
    A("s_bfe_u32 s37, s2, 0x10003"); A("s_lshl_b32 s37, s37, 16"); A("s_add_u32 s36, s36, s37")
    C("K: lane (s, key = (l>>2)&3, u = l&3) holds the 16-byte chunk (s>>1)*8 + (u>>1)*4 + (s&1)*2 + (u&1)")
    A("v_lshrrev_b32 v5, 5, v0"); A("v_lshlrev_b32 v8, 7, v5"); A("v_bfe_u32 v5, v0, 4, 1"); A("v_lshl_add_u32 v8, v5, 5, v8")
    A("v_bfe_u32 v5, v0, 2, 2"); A(f"v_lshl_add_u32 v{LB}, v5, 8, v8")
    A("v_bfe_u32 v5, v0, 1, 1"); A(f"v_lshl_add_u32 v{LB}, v5, 6, v{LB}"); A(f"v_lshlrev_b32 v{LD_}, 10, v5")
    A("v_and_b32 v5, 1, v0"); A(f"v_lshl_add_u32 v{LB}, v5, 4, v{LB}")
    A("s_mov_b32 s14, 0xf0000"); A("s_mov_b32 s15, 0x20000")
    A("s_waitcnt lgkmcnt(0)")
    A("s_add_u32 s12, s4, s36"); A("s_addc_u32 s13, s5, 0")
    for p in (6, 8, 10):
        A(f"s_add_u32 s{p}, s{p}, s36"); A(f"s_addc_u32 s{p+1}, s{p+1}, 0")
    def tile_off(u):
        A(f"s_bfe_u32 s39, s{u}, 0x30003"); A("s_lshl_b32 s39, s39, 17")
        A(f"s_and_b32 s38, s{u}, 7"); A("s_lshl_b32 s38, s38, 13"); A("s_add_u32 s39, s39, s38")
    def load(r0, half):
        if half:
            A(f"v_add_u32 v2, s39, v{LB}"); A("v_add_u32 v3, 1024, v2")
            A("v_add_u32 v2, v2, v1"); A("v_sub_u32 v3, v3, v1")
            A("v_add_u32 v4, 0x1000, v2"); A("v_add_u32 v5, 0x1000, v3")
            for e in range(8):
                A(f"buffer_load_dwordx4 v[{r0+e*4}:{r0+e*4+3}], v{2 + (e&1) + 2*(e>>2)}, s[12:15], 0 offen offset:{(e&2)*1024} nt")
        else:
            A(f"v_add_u32 v2, s39, v{LB}"); A("v_add_u32 v3, 0x1000, v2")
            for e in range(8):
                A(f"buffer_load_dwordx4 v[{r0+e*4}:{r0+e*4+3}], v{2 + (e>>2)}, s[12:15], 0 offen offset:{(e&3)*1024} nt")
    def woload():
        for e in range(8):
            A(f"buffer_load_dwordx4 v[{WR+e*4}:{WR+e*4+3}], v{WOF}, s[24:27], s{62 + (e>>2)} offen offset:{(e&3)*1024} nt")
    def s_addr(j):
        A(f"s_and_b32 s38, s{U[j]}, 63"); A("s_lshl_b32 s38, s38, 9")
        A(f"s_lshr_b32 s39, s{U[j]}, 7"); A("s_lshl_b32 s39, s39, 15"); A("s_add_u32 s38, s38, s39")
        A(f"v_add_u32 v7, s38, v{SA}")
    def xgroup(reg, op, dst):
        A(f"v_mov_b32 v{T1}, v{reg}"); nop(2)
        A(f"v_permlane32_swap_b32 v{reg}, v{T1}"); A(f"{op} v{reg}, v{reg}, v{T1}")
        A(f"v_mov_b32 v{T1}, v{reg}"); nop(2)
        A(f"v_permlane16_swap_b32 v{reg}, v{T1}"); A(f"{op} v{dst}, v{reg}, v{T1}")
    def kproc(r0, flagbit, tag):
        for e in range(8):
            A(f"v_mfma_f32_16x16x32_bf16 v[{O+e*4}:{O+e*4+3}], v[{r0+e*4}:{r0+e*4+3}], v[{Q}:{Q+3}], 0")
        nop(1)
        for e in range(8):
            A(f"v_cndmask_b32 v{S+e}, v{O+e*4}, v{O+e*4+1}, s[94:95]"); A(f"v_cndmask_b32 v{T+e}, v{O+e*4+2}, v{O+e*4+3}, s[94:95]")
        if flagbit is not None:
            A(f"s_bitcmp1_b32 s56, {flagbit}"); A(f"s_cbranch_scc1 L_kx{tag}")
        for e in range(8): A(f"v_cndmask_b32 v{S+e}, v{S+e}, v{T+e}, s[96:97]")
        if flagbit is not None:
            A(f"s_branch L_ky{tag}")
            A(f"L_kx{tag}:")
            for e in range(8): A(f"v_cndmask_b32 v{S+e}, v{S+e}, v{T+(e^1)}, s[96:97]")
            A(f"L_ky{tag}:")
        for k in (4, 8):
            for e in range(8): A(f"v_add_f32_dpp v{S+e}, v{S+e}, v{S+e} {ROR(k)}")
        A("s_mov_b64 exec, s[18:19]")
        A(f"ds_write_b128 v7, v[{S}:{S+3}]"); A(f"ds_write_b128 v7, v[{S+4}:{S+7}] offset:16")
        A("s_mov_b64 exec, -1")
        A(f"v_max3_f32 v{M_}, v{M_}, v{S}, v{S+1}"); A(f"v_max3_f32 v{T0}, v{S+2}, v{S+3}, v{S+4}")
        A(f"v_max3_f32 v{M_}, v{M_}, v{S+5}, v{S+6}"); A(f"v_max3_f32 v{M_}, v{M_}, v{T0}, v{S+7}")
        A(f"v_mul_f32 v{T0}, s42, v{M_}"); A(f"v_sub_f32 v{T1}, v{MC}, v{T0}"); A(f"v_mov_b32 v{MC}, v{T0}"); A(f"v_exp_f32 v{T1}, v{T1}")
        for i in range(8): A(f"v_fma_f32 v{T+i}, v{S+i}, s42, -v{MC}")
        for i in range(8): A(f"v_exp_f32 v{T+i}, v{T+i}")
        A(f"v_fma_f32 v{LS}, v{LS}, v{T1}, v{T}")
        A(f"v_add_f32 v{T+1}, v{T+1}, v{T+2}"); A(f"v_add_f32 v{T+3}, v{T+3}, v{T+4}"); A(f"v_add_f32 v{T+5}, v{T+5}, v{T+6}")
        A(f"v_add_f32 v{LS}, v{LS}, v{T+7}"); A(f"v_add_f32 v{T+1}, v{T+1}, v{T+3}"); A(f"v_add_f32 v{LS}, v{LS}, v{T+5}"); A(f"v_add_f32 v{LS}, v{LS}, v{T+1}")
    seq = [("r", 0)] + [("s", j) for j in range(4)]
    def issue(n):
        kind, k = seq[n]
        u = U[k] if kind == "s" else 3
        A(f"s_add_u32 s{u}, s33, {4*n}")
        tile_off(u)
        if n: A(f"s_waitcnt vmcnt({N0})")
        if kind == "r": load(WR, False)
        else: load(RG[k], k % 2 == 0)
    A(f"v_mov_b32 v1, v{LD_}")
    C("the helper's weight loads go first")
    A("s_barrier")
    issue(0)
    srd(24, 46, 47, 4 << 20)
    A(f"s_mov_b32 s42, {CSC:#x}")
    A(f"v_mov_b32 v{M_}, {NEG:#x}"); A(f"v_mov_b32 v{MC}, {NEGC:#x}"); A(f"v_mov_b32 v{LS}, 0")
    A(f"v_mov_b32 v{ZERO}, 0"); A(f"v_mov_b32 v{ONE}, 1"); A(f"v_mov_b32 v{TK}, 0"); A(f"v_mov_b32 v{FU}, 0")
    A(f"v_lshlrev_b32 v{VB}, 4, v0"); A(f"v_mov_b32 v{LB2}, v{VB}")
    A("v_and_b32 v10, 3, v0"); A("v_lshrrev_b32 v9, 4, v0")
    A(f"v_lshl_add_u32 v{QAD}, v10, 8, v8")
    A("v_bfe_u32 v11, v0, 3, 1"); A(f"v_lshl_add_u32 v{QAD}, v11, 6, v{QAD}"); A("v_cmp_eq_u32 s[96:97], 1, v11")
    A("v_bfe_u32 v11, v0, 2, 1"); A(f"v_lshl_add_u32 v{QAD}, v11, 4, v{QAD}"); A("v_cmp_eq_u32 s[94:95], 1, v11"); A(f"v_lshlrev_b32 v{LD2}, 10, v11")
    A(f"v_lshlrev_b32 v{SA}, 5, v10"); A(f"v_lshl_add_u32 v{SA}, v9, 7, v{SA}"); A(f"v_add_u32 v{SA}, {L_S}, v{SA}")
    A(f"v_mul_u32_u24 v{FLA}, {HS}, v10"); A(f"v_lshl_add_u32 v{FLA}, v9, 7, v{FLA}"); A("v_bfe_u32 v11, v0, 2, 2"); A(f"v_lshl_add_u32 v{FLA}, v11, 3, v{FLA}")
    A(f"s_mul_i32 s36, s33, {WSZ}"); A(f"v_add_u32 v{FLA}, s36, v{FLA}")
    for u in range(4):
        A(f"v_cmp_eq_u32 vcc, {u}, v11"); nop(2); A(f"v_cndmask_b32 v{MK+u}, 0, -1, vcc")
    A("v_and_b32 v10, 12, v0"); A("v_cmp_eq_u32 s[18:19], 0, v10")
    A(f"v_mov_b32 v{SLS}, s40"); A(f"v_mov_b32 v{SHS}, s41"); A("v_mov_b32 v10, 0x01000504"); A("v_mov_b32 v11, 0x03020706")
    A(f"v_cndmask_b32 v{SLS}, v{SLS}, v10, s[94:95]"); A(f"v_cndmask_b32 v{SHS}, v{SHS}, v11, s[94:95]")
    A(f"v_lshlrev_b32 v{WOF}, 13, v9"); A("v_and_b32 v9, 15, v0"); A(f"v_lshl_add_u32 v{WOF}, v9, 4, v{WOF}")
    C("addresses of the final sum of the four waves: wave = head, lane (block = l>>5, i = l&31) holds dims 4i..4i+3")
    A("v_lshrrev_b32 v10, 5, v0"); A("v_and_b32 v11, 31, v0")
    A(f"v_mul_u32_u24 v{CRA}, {4*WSZ}, v10"); A(f"v_lshl_add_u32 v{CRA}, v11, 4, v{CRA}"); A(f"s_mul_i32 s36, s33, {HS}"); A(f"v_add_u32 v{CRA}, s36, v{CRA}")
    A("s_lshl_b32 s36, s33, 2"); A(f"v_lshl_add_u32 v{CWA}, v10, 4, s36")
    A(f"s_mov_b32 s36, {BSTR:#x}"); A(f"v_mul_lo_u32 v{PBA}, v10, s36"); A(f"v_lshl_add_u32 v{PBA}, v11, 4, v{PBA}")
    if LOC:
        A("s_lshr_b32 s29, s2, 5"); A("s_bfe_u32 s58, s2, 0x20003"); A("s_bfe_u32 s59, s2, 0x10002"); A("s_lshl_b32 s59, s59, 1"); A("s_and_b32 s37, s2, 1"); A("s_add_u32 s59, s59, s37")
    else:
        A("s_lshr_b32 s58, s30, 2"); A("s_and_b32 s59, s30, 3")
    A("s_lshl_b32 s62, s29, 19"); A("s_lshl_b32 s37, s58, 17"); A("s_add_u32 s62, s62, s37")
    A("s_lshl_b32 s37, s33, 15"); A("s_add_u32 s62, s62, s37")
    A("s_lshl_b32 s37, s59, 8"); A("s_add_u32 s62, s62, s37"); A("s_add_u32 s63, s62, 4096")
    A(f"s_mul_i32 s39, s33, {HPS}"); A("s_add_u32 s32, s32, s39")
    A("s_lshl_b32 s57, s28, 3"); A("s_add_u32 s57, s57, s29"); A(f"s_mul_i32 s57, s57, {32*PSTR}"); A(f"s_mul_i32 s39, s58, {HPS}"); A("s_add_u32 s57, s57, s39"); A(f"s_add_u32 s57, s57, {WS_PO:#x}")
    A("s_mov_b32 s60, 0"); A("s_mov_b32 s50, 0"); A("s_mov_b32 s51, 0"); A("s_mov_b32 s56, 5")
    if diag: A("s_mov_b32 s43, 0")
    assert N0 <= 8
    for n in range(1, len(seq)): issue(n)
    def qwait(lbl, blk):
        A(f"{lbl}:")
        A(f"ds_read_b32 v9, v{ZERO} offset:{L_QF + 4*blk}")
        A("s_waitcnt lgkmcnt(0)")
        A("v_readfirstlane_b32 s37, v9")
        A("s_cmp_lg_u32 s37, 0"); A(f"s_cbranch_scc1 {lbl}ok")
        A("s_sleep 1")
        spin(lbl)
        A(f"{lbl}ok:")
        A(f"ds_read_b128 v[{Q}:{Q+3}], v{QAD} offset:{L_Q + blk*1024}")
    qwait("L_qa", 0)
    A(f"ds_read_b32 v{TG}, v{ZERO} offset:{L_TAG}")
    stamp(2)
    C("extra start-up batch (older than the ring loads, landed by now)")
    A("s_lshl_b32 s38, s33, 9"); A(f"v_add_u32 v7, s38, v{SA}")
    A("s_waitcnt lgkmcnt(0)")
    kproc(WR, None, "x")
    A("s_branch L_body0")
    C("phase change of the processing side: s50 -> s65")
    A("L_trans:")
    A("s_bitcmp1_b32 s50, 0"); A("s_cbranch_scc1 L_tr_v")
    xgroup(M_, "v_max_f32", M_)
    A(f"v_mul_f32 v{T0}, s42, v{M_}"); A(f"v_sub_f32 v{T0}, v{MC}, v{T0}"); A(f"v_min_f32 v{T0}, 0, v{T0}"); A(f"v_exp_f32 v{T0}, v{T0}"); nop(1)
    A(f"v_mul_f32 v{LS}, v{LS}, v{T0}")
    xgroup(LS, "v_add_f32", LS)
    A("s_lshl_b32 s36, s50, 5"); A("v_and_b32 v9, 3, v0"); A("v_lshl_add_u32 v9, v9, 2, s36")
    A("s_lshl_b32 s37, s33, 4"); A("v_add_u32 v10, s37, v9")
    A(f"ds_write_b32 v10, v{M_} offset:{L_MX}"); A(f"ds_write_b32 v10, v{LS} offset:{L_LA}")
    A("s_lshl_b32 s36, s50, 1"); A("v_mov_b32 v10, s36")
    A("s_mov_b64 exec, 1")
    A(f"ds_add_u32 v10, v{ONE} offset:{L_CNT}")
    A("s_mov_b64 exec, -1")
    for i in range(8): A(f"v_mov_b32 v{O+i}, 0")
    A("L_tr_w:")
    A(f"ds_read_b32 v11, v10 offset:{L_CNT}")
    A("s_waitcnt lgkmcnt(0)")
    A("v_readfirstlane_b32 s37, v11")
    A("s_cmp_ge_u32 s37, 4"); A("s_cbranch_scc1 L_tr_k2")
    spin("L_tr_w")
    A("L_tr_k2:")
    A(f"v_add_u32 v9, {L_MX}, v9")
    A("ds_read2_b32 v[12:13], v9 offset0:0 offset1:4"); A("ds_read2_b32 v[14:15], v9 offset0:8 offset1:12")
    A("s_waitcnt lgkmcnt(0)")
    A("v_max3_f32 v12, v12, v13, v14"); A("v_max_f32 v12, v12, v15")
    A(f"v_mul_f32 v{MC}, s42, v12")
    A("s_branch L_tr_n")
    A("L_tr_v:")
    A("s_lshr_b32 s36, s50, 1"); A(f"s_mul_i32 s37, s36, {4*WSZ}"); A(f"s_add_u32 s37, s37, {L_OA}"); A(f"v_add_u32 v9, s37, v{FLA}")
    for r in range(4): A(f"ds_write2_b32 v9, v{O+r}, v{O+4+r} offset0:{r*8} offset1:{r*8+1}")
    A("s_cmp_eq_u32 s50, 3"); A("s_cbranch_scc1 L_tr_n")
    A(f"v_mov_b32 v{M_}, {NEG:#x}"); A(f"v_mov_b32 v{MC}, {NEGC:#x}"); A(f"v_mov_b32 v{LS}, 0")
    qwait("L_qb", 1)
    A("s_waitcnt lgkmcnt(0)")
    A("L_tr_n:")
    A("s_add_u32 s50, s50, 1"); A("s_cmp_lt_u32 s50, s65"); A("s_cbranch_scc1 L_trans")
    A("s_setpc_b64 s[16:17]")
    for j in range(4):
        A(f"L_tcall{j}:")
        A("s_call_b64 s[16:17], L_trans")
        A(f"s_branch L_tok{j}")
        A(f"L_ldph{j}:")
        A("s_mov_b64 s[12:13], s[6:7]"); A("s_mov_b64 s[6:7], s[8:9]"); A("s_mov_b64 s[8:9], s[10:11]")
        A(f"v_swap_b32 v{LB}, v{LB2}"); A(f"v_swap_b32 v{LD_}, v{LD2}")
        A("s_add_u32 s51, s51, 1"); A("s_cmp_lt_u32 s51, s36"); A(f"s_cbranch_scc1 L_ldph{j}")
        A(f"s_branch L_ldok{j}")
        A(f"L_ewk{j}:"); A("s_waitcnt vmcnt(0)"); A(f"s_branch L_kgo{j}")
        A(f"L_ewv{j}:")
        A("s_waitcnt vmcnt(16)"); A("s_cmp_eq_u32 s60, 1"); A(f"s_cbranch_scc1 L_vgo{j}")
        A("s_waitcnt vmcnt(8)"); A("s_cmp_eq_u32 s60, 2"); A(f"s_cbranch_scc1 L_vgo{j}")
        A("s_waitcnt vmcnt(0)")
        A(f"s_branch L_vgo{j}")
        A(f"L_endstep{j}:")
        A("s_add_u32 s60, s60, 1"); A("s_cmp_eq_u32 s60, 4"); A("s_cbranch_scc1 L_exit")
        A(f"s_branch L_body{(j+1)%4}")
        A(f"L_k{j}:")
        A("s_cmp_lg_u32 s60, 0"); A(f"s_cbranch_scc1 L_ewk{j}")
        A("s_waitcnt vmcnt(24)")
        A(f"L_kgo{j}:")
        kproc(RG[j], j if j % 2 == 0 else None, j)
        A(f"s_branch L_refill{j}")
    for j in range(4):
        def ticket():
            A("s_mov_b64 exec, 1")
            A(f"ds_add_rtn_u32 v{TK}, v{ZERO}, v{ONE} offset:{L_TK}")
            A(f"ds_read_b32 v{FU}, v{ZERO} offset:{L_FU}")
            A("s_mov_b64 exec, -1")
        A(f"L_body{j}:")
        if diag: A("s_add_u32 s43, s43, 1")
        A(f"s_lshr_b32 s65, s{U[j]}, 6"); A("s_cmp_lg_u32 s65, s50"); A(f"s_cbranch_scc1 L_tcall{j}")
        A(f"L_tok{j}:")
        s_addr(j)
        A("s_bitcmp0_b32 s50, 0"); A(f"s_cbranch_scc1 L_k{j}")
        A(f"ds_read_b128 v[{S}:{S+3}], v7"); A(f"ds_read_b128 v[{S+4}:{S+7}], v7 offset:16")
        if j % 2 == 0:
            A(f"s_bitcmp1_b32 s56, {j}"); A("s_cselect_b64 vcc, -1, 0")
            A(f"v_mov_b32 v{SELL}, s40"); A(f"v_mov_b32 v{SELH}, s41")
            A(f"v_cndmask_b32 v{SELL}, v{SELL}, v{SLS}, vcc"); A(f"v_cndmask_b32 v{SELH}, v{SELH}, v{SHS}, vcc")
            sl, sh = f"v{SELL}", f"v{SELH}"
        else:
            sl, sh = "s40", "s41"
        A("s_waitcnt lgkmcnt(0)")
        for i in range(8): A(f"v_fma_f32 v{S+i}, v{S+i}, s42, -v{MC}")
        for i in range(8): A(f"v_exp_f32 v{S+i}, v{S+i}")
        for p in range(4): A(f"v_cvt_pk_bf16_f32 v{S+p}, v{S+2*p}, v{S+2*p+1}")
        for u in range(4):
            for p in range(4): A(f"v_and_b32 v{PM+u*4+p}, v{S+p}, v{MK+u}")
        A("s_cmp_lg_u32 s60, 0"); A(f"s_cbranch_scc1 L_ewv{j}")
        A("s_waitcnt vmcnt(24)")
        A(f"L_vgo{j}:")
        src = RG[j]
        for w in range(4):
            for p in range(4):
                A(f"v_perm_b32 v{T+p}, v{src+(2*p+1)*4+w}, v{src+(2*p)*4+w}, {sl}")
            for p in range(4):
                A(f"v_perm_b32 v{T+4+p}, v{src+(2*p+1)*4+w}, v{src+(2*p)*4+w}, {sh}")
            a0 = O; a1 = O + 4
            A(f"v_mfma_f32_16x16x32_bf16 v[{a0}:{a0+3}], v[{T}:{T+3}], v[{PM+w*4}:{PM+w*4+3}], v[{a0}:{a0+3}]")
            nop(1)
            A(f"v_mfma_f32_16x16x32_bf16 v[{a1}:{a1+3}], v[{T+4}:{T+7}], v[{PM+w*4}:{PM+w*4+3}], v[{a1}:{a1+3}]")
        A(f"L_refill{j}:")
        A("s_cmp_lg_u32 s60, 0"); A(f"s_cbranch_scc1 L_endstep{j}")
        if N2 < 24: A(f"s_waitcnt vmcnt({N2})")
        ticket()
        A("s_waitcnt lgkmcnt(0)")
        A(f"v_readfirstlane_b32 s{U[j]}, v{TK}"); A(f"v_readfirstlane_b32 s3, v{FU}")
        A(f"s_cmp_ge_u32 s{U[j]}, 256"); A(f"s_cbranch_scc1 L_endstep{j}")
        A(f"s_lshr_b32 s36, s{U[j]}, 6"); A("s_cmp_lg_u32 s36, s51"); A(f"s_cbranch_scc1 L_ldph{j}")
        A(f"L_ldok{j}:")
        tile_off(U[j])
        if j % 2 == 0:
            A(f"s_cmp_ge_u32 s{U[j]}, s3"); A("s_cselect_b32 s38, -1, 0")
            A(f"s_bitset0_b32 s56, {j}"); A(f"s_and_b32 s37, s38, {1 << j}"); A("s_or_b32 s56, s56, s37")
            A(f"v_and_b32 v1, s38, v{LD_}")
        load(RG[j], j % 2 == 0)
    A("s_branch L_body0")
    A("L_exit:")
    stamp(3)
    if diag: A("s_waitcnt lgkmcnt(0)")
    A("s_mov_b32 s65, 4")
    A("s_call_b64 s[16:17], L_trans")
    woload()
    A("s_waitcnt lgkmcnt(0)")
    A("s_barrier")
    stamp(4)
    for w in range(4): A(f"ds_read_b128 v[{24+w*4}:{27+w*4}], v{CRA} offset:{L_OA + w*WSZ}")
    A(f"ds_read_b32 v40, v{CWA} offset:{L_W}")
    A(f"ds_read_b32 v41, v{ZERO} offset:{L_FU+4}")
    A("s_waitcnt lgkmcnt(0)")
    for i in range(4):
        A(f"v_add_f32 v{24+i}, v{24+i}, v{28+i}"); A(f"v_add_f32 v{32+i}, v{32+i}, v{36+i}")
    for i in range(4): A(f"v_add_f32 v{48+i}, v{24+i}, v{32+i}")
    for i in range(4): A(f"v_mul_f32 v{48+i}, v{48+i}, v40")
    for i in range(4): A(f"v_min_u32 v{48+i}, -2, v{48+i}")
    A(f"buffer_store_dwordx4 v[48:51], v{PBA}, s[20:23], s32 offen sc1")
    stamp(5)
    LD = 64; LM = 80; WT = 96; DD = 128
    OWA, ORA, RDA, GRA = 56, 57, 58, 59
    C("first hand-off: wave w gathers dims 32w..32w+31 of its head; lane (p = l&7, u = l>>3): slot (b = u>>1, split = (u&1) + 2i)")
    A("v_lshrrev_b32 v8, 4, v0"); A(f"v_mul_u32_u24 v9, {8*PSTR}, v8")
    A("v_bfe_u32 v10, v0, 3, 1"); A(f"v_mul_u32_u24 v10, {PSTR}, v10"); A("v_add_u32 v9, v9, v10")
    A("v_and_b32 v11, 7, v0"); A("s_lshl_b32 s36, s33, 7"); A("v_lshl_add_u32 v10, v11, 4, v9"); A("v_add_u32 v10, s36, v10")
    for i in range(4): A(f"s_add_u32 s{52+i}, s57, {2*i*PSTR}")
    A("s_lshl_b32 s36, s33, 8"); A(f"s_add_u32 s36, s36, {L_OB}")
    A(f"v_lshlrev_b32 v{OWA}, 6, v8"); A(f"v_lshl_add_u32 v{OWA}, v11, 3, v{OWA}"); A(f"v_add_u32 v{OWA}, s36, v{OWA}")
    A("v_and_b32 v12, 3, v0"); A(f"v_lshlrev_b32 v{ORA}, 6, v12"); A(f"v_lshl_add_u32 v{ORA}, v8, 4, v{ORA}"); A(f"v_add_u32 v{ORA}, s36, v{ORA}")
    A(f"s_mul_i32 s36, s33, {HS}"); A(f"v_lshl_add_u32 v{RDA}, v0, 3, s36"); A(f"v_add_u32 v{FLA}, {L_R2}, v{FLA}")
    A("v_lshrrev_b32 v13, 3, v0"); A(f"v_lshlrev_b32 v{GRA}, 12, v13"); A(f"v_lshl_add_u32 v{GRA}, v11, 4, v{GRA}")
    A("s_lshl_b32 s61, s28, 2"); A("s_add_u32 s61, s61, s59"); A("s_lshl_b32 s61, s61, 17"); A(f"s_add_u32 s61, s61, {WS_OP:#x}")
    A("s_lshl_b32 s63, s29, 2"); A("s_add_u32 s63, s63, s58")
    A("s_lshl_b32 s36, s33, 3"); A("s_add_u32 s36, s36, s63"); A("v_add_u32 v13, s36, v13"); A("v_and_b32 v13, 31, v13")
    A(f"v_lshl_add_u32 v{GRA}, v13, 7, v{GRA}")
    A("s_lshl_b32 s37, s33, 15"); A("s_add_u32 s62, s61, s37")
    A("s_lshl_b32 s36, s63, 12"); A("s_add_u32 s61, s61, s36"); A("s_lshl_b32 s37, s33, 10"); A("s_add_u32 s61, s61, s37")
    srd(12, 48, 49, 8192)
    A("s_lshr_b32 s3, s63, 3"); A("s_lshl_b32 s3, s3, 11"); A("s_lshl_b32 s37, s28, 10"); A("s_add_u32 s3, s3, s37")
    A("s_lshl_b32 s37, s59, 8"); A("s_add_u32 s3, s3, s37"); A("s_and_b32 s37, s63, 7"); A("s_lshl_b32 s37, s37, 5"); A("s_add_u32 s3, s3, s37")
    A("v_lshlrev_b32 v14, 3, v11"); A("s_lshl_b32 s37, s33, 6"); A("v_add_u32 v15, s37, v14")
    A("v_readfirstlane_b32 s50, v41")
    for i in range(4): A(f"s_mov_b64 s[{94+2*i}:{95+2*i}], -1")
    if WARM:
        A("s_cmp_eq_u32 s50, 0"); A("s_cbranch_scc1 L_nowarm")
        A(f"buffer_load_dwordx4 v[32:35], v{VB}, s[20:23], s61 offen sc1")
        A("s_waitcnt vmcnt(2)"); A("s_branch L_warmed")
        A("L_nowarm:")
    A("s_waitcnt vmcnt(1)")
    A("L_warmed:")
    transpose(WR, WT)
    C("a line read before it is written stays stale in L2 for a while: start reading once the own partials have arrived")
    A("s_waitcnt vmcnt(0)")
    A("L_p1:")
    for i in range(4):
        A(f"s_mov_b64 exec, s[{94+2*i}:{95+2*i}]")
        A(f"s_cbranch_execz L_p1s{i}")
        A(f"buffer_load_dwordx4 v[{LD+i*4}:{LD+i*4+3}], v10, s[20:23], s{52+i} offen sc1")
        A(f"L_p1s{i}:")
    A("s_mov_b64 exec, -1")
    A("s_waitcnt vmcnt(0)")
    for i in range(4): A(f"v_max3_u32 v{16+i}, v{LD+i*4}, v{LD+i*4+1}, v{LD+i*4+2}")
    for i in range(4): A(f"v_max_u32 v{16+i}, v{16+i}, v{LD+i*4+3}")
    for i in range(4): A(f"v_cmp_eq_u32 s[{94+2*i}:{95+2*i}], -1, v{16+i}")
    for k in range(4):
        A(f"v_add_f32 v{24+k}, v{LD+k}, v{LD+4+k}"); A(f"v_add_f32 v{28+k}, v{LD+8+k}, v{LD+12+k}")
    for k in range(4): A(f"v_add_f32 v{24+k}, v{24+k}, v{28+k}")
    A("s_or_b64 s[36:37], s[94:95], s[96:97]"); A("s_or_b64 s[38:39], s[98:99], s[100:101]"); A("s_or_b64 s[38:39], s[38:39], s[36:37]")
    A("s_cbranch_scc0 L_got1")
    spin("L_p1")
    A("L_got1:")
    stamp(6)
    for i in range(4): A(f"v_add_f32_dpp v{24+i}, v{24+i}, v{24+i} {ROR8}")
    A("v_cvt_pk_bf16_f32 v32, v24, v25"); A("v_cvt_pk_bf16_f32 v33, v26, v27")
    A(f"ds_write_b64 v{OWA}, v[32:33]")
    A(f"ds_read_b128 v[36:39], v{ORA}")
    A("s_waitcnt lgkmcnt(0)")
    for u in range(4):
        for p in range(4): A(f"v_and_b32 v{40+u*4+p}, v{36+p}, v{MK+u}")
        if u:
            for a_ in range(2):
                jn = 2*(u-1) + a_; c = "0" if u == 1 else f"v[{DD+a_*4}:{DD+a_*4+3}]"
                A(f"v_mfma_f32_16x16x32_bf16 v[{DD+a_*4}:{DD+a_*4+3}], v[{WT+jn*4}:{WT+jn*4+3}], v[{40+(u-1)*4}:{43+(u-1)*4}], {c}")
    for a_ in range(2):
        A(f"v_mfma_f32_16x16x32_bf16 v[{DD+a_*4}:{DD+a_*4+3}], v[{WT+(6+a_)*4}:{WT+(6+a_)*4+3}], v[52:55], v[{DD+a_*4}:{DD+a_*4+3}]")
    nop(8)
    for r in range(4): A(f"ds_write2_b32 v{FLA}, v{DD+r}, v{DD+4+r} offset0:{r*8} offset1:{r*8+1}")
    A("s_waitcnt lgkmcnt(0)")
    A("s_barrier")
    stamp(7)
    for w in range(4): A(f"ds_read_b64 v[{16+w*2}:{17+w*2}], v{RDA} offset:{L_R2 + w*WSZ}")
    A(f"v_mov_b32 v25, v{TG}"); A(f"v_mov_b32 v27, v{TG}")
    A("s_waitcnt lgkmcnt(0)")
    A("v_add_f32 v16, v16, v18"); A("v_add_f32 v17, v17, v19"); A("v_add_f32 v20, v20, v22"); A("v_add_f32 v21, v21, v23")
    A("v_add_f32 v24, v16, v20"); A("v_add_f32 v26, v17, v21")
    C("second hand-off: tagged partial outputs; every workgroup finishes 16 output elements")
    A("s_mov_b64 vcc, -1"); A("v_lshlrev_b32 v8, 2, v0")
    A("s_cmp_lg_u32 s50, 0"); A("s_cbranch_scc1 L_opl")
    A(f"buffer_store_dwordx4 v[24:27], v{GRA}, s[20:23], s62 offen sc1")
    A("s_waitcnt vmcnt(0)")
    A("s_branch L_poll2")
    A("L_opl:")
    A(f"buffer_store_dwordx4 v[24:27], v{GRA}, s[20:23], s62 offen")
    stamp(10)
    A("L_poll2:")
    A("s_mov_b64 exec, vcc")
    A(f"buffer_load_dwordx4 v[32:35], v{VB}, s[20:23], s61 offen sc1")
    A("s_mov_b64 exec, -1")
    A("s_waitcnt vmcnt(0)")
    A(f"v_xor_b32 v6, v33, v{TG}"); A(f"v_xor_b32 v7, v35, v{TG}"); A("v_or_b32 v6, v6, v7")
    A("v_cmp_ne_u32 vcc, 0, v6")
    A("s_cbranch_vccz L_got2")
    spin("L_poll2")
    A("L_got2:")
    A(f"v_add_f32_dpp v32, v32, v32 {ROR8}"); A(f"v_add_f32_dpp v34, v34, v34 {ROR8}")
    A("v_mov_b32 v33, v32"); A("v_mov_b32 v35, v34"); nop(1)
    A("v_permlane32_swap_b32 v32, v33"); A("v_permlane32_swap_b32 v34, v35")
    A("v_add_f32 v32, v32, v33"); A("v_add_f32 v34, v34, v35")
    A("v_mov_b32 v33, v32"); A("v_mov_b32 v35, v34"); nop(1)
    A("v_permlane16_swap_b32 v32, v33"); A("v_permlane16_swap_b32 v34, v35")
    A("v_add_f32 v32, v32, v33"); A("v_add_f32 v33, v34, v35")
    A("s_mov_b64 exec, 0xff")
    A(f"ds_write_b64 v15, v[32:33] offset:{L_Q}")
    A("s_waitcnt lgkmcnt(0)")
    A("s_barrier")
    A("s_cmp_lg_u32 s33, 0"); A("s_cbranch_scc1 L_sdone")
    A(f"ds_read2_b64 v[32:35], v14 offset0:{L_Q//8} offset1:{L_Q//8+8}")
    A(f"ds_read2_b64 v[36:39], v14 offset0:{L_Q//8+16} offset1:{L_Q//8+24}")
    A("s_waitcnt lgkmcnt(0)")
    A("v_add_f32 v32, v32, v34"); A("v_add_f32 v33, v33, v35"); A("v_add_f32 v36, v36, v38"); A("v_add_f32 v37, v37, v39")
    A("v_add_f32 v32, v32, v36"); A("v_add_f32 v33, v33, v37")
    A("v_cvt_pk_bf16_f32 v32, v32, v33")
    A("buffer_store_dword v32, v8, s[12:15], s3 offen")
    A("s_cmp_lg_u32 s2, 0"); A("s_cbranch_scc1 L_sdone")
    C("every workgroup has contributed to this result, so every workgroup has read the old tag")
    A(f"s_mov_b32 s37, {WS_EPOCH:#x}")
    A("s_mov_b64 exec, 1")
    A(f"buffer_store_dword v{TG}, v{ZERO}, s[20:23], s37 offen sc1")
    A("L_sdone:")
    if diag:
        A("s_waitcnt vmcnt(0)")
        stamp(9)
        A("s_cmp_lg_u32 s33, 0"); A("s_cbranch_scc1 L_end2")
        stamps_out(11, 0, "s43")
        A("L_end2:")
    A("s_endpgm")

    A('.section .rodata,"a"'); A(".p2align 6"); A(f".amdhsa_kernel {NAME}_kernel")
    A("  .amdhsa_next_free_vgpr 256"); A("  .amdhsa_next_free_sgpr 102"); A("  .amdhsa_accum_offset 256")
    A("  .amdhsa_group_segment_fixed_size 0"); A("  .amdhsa_kernarg_size 104"); A("  .amdhsa_user_sgpr_count 2")
    A("  .amdhsa_user_sgpr_kernarg_segment_ptr 1"); A("  .amdhsa_system_sgpr_workgroup_id_x 1"); A(".end_amdhsa_kernel")
    return "\n".join(x for x in L if x) + "\n"

HEADER = """
Two GQA decode blocks in one launch, 256 workgroups (one per CU) of 4 streaming waves + 1 helper wave.
Every workgroup owns 2048 keys of one (batch, kv head) in both blocks and streams K_A, V_A, K_B, V_B in that order:
scores go to LDS, the workgroup's true maximum is taken after each K phase, P*V is accumulated with MFMA.
q = x*wq is computed in 256 slices by the helper waves and handed over through d_ws (tagged granules).
The 8 workgroups of a pair exchange maximum and sum during the V phase, so the partials are published already weighted;
they are summed and multiplied by wo in 128x128 tiles, then reduced over heads; both hand-offs go through d_ws.
The last hand-off uses plain stores only after the workgroups involved have checked (HW_REG_XCC_ID) that they share an L2.
Every wait loop is bounded (s64); s_sleep appears only inside wait loops.
"""

def emit(V):
    for n, kw in V.items():
        open(n + ".s", "w").write(gen(False, **kw))
        open(n + "_d.s", "w").write(gen(True, **kw))
    print(" ".join(n + ".s" for n in V)); print(" ".join(n + "_d.s" for n in V))
    print(",".join(f'"work/{n}.s","work/{n}_d.s"' for n in V))

if __name__ == "__main__":
    emit({"final6": {}})
```
